```python
import torch

def _softmax(x, axis=-1):
    return torch.softmax(x, dim=axis)
def _gelu(x):
    return torch.nn.functional.gelu(x, approximate="tanh")
def _silu(x):
    return torch.nn.functional.silu(x)
def _sigmoid(x):
    return torch.sigmoid(x)
def _layernorm(x, axis=-1, eps=1e-5):
    m = x.mean(dim=axis, keepdim=True)
    v = x.var(dim=axis, keepdim=True, unbiased=False)
    return (x - m) / torch.sqrt(v + eps)
def _scatter_add(tgt, idx, src, axis=0):
    return tgt.clone().index_add_(axis, idx, src)
def _segment_sum(src, seg, n):
    out = torch.zeros((n,) + src.shape[1:], dtype=src.dtype)
    return out.index_add_(0, seg, src)
def _pad(x, pw):
    flat = tuple(v for pair in reversed(pw) for v in pair)
    return torch.nn.functional.pad(x, flat)

kernel_name = 'concat_heads__sliding_block__sliding_block__prompt'

def setup_inputs():

    _w = (lambda a: (lambda t: t.to(torch.bfloat16) if t.is_floating_point() else t)(torch.as_tensor(a)))
    def _A_setup():
        B, S, D = 1, 2048, 448
        return {
            "x": _w((lambda *s: torch.randn(*s, dtype=torch.bfloat16) * 0.4)(B, S, D)),
            "wqkv": _w((lambda *s: torch.randn(*s, dtype=torch.bfloat16) * 0.4)(D, 3 * D)),
            "wo": _w((lambda *s: torch.randn(*s, dtype=torch.bfloat16) * 0.05)(D, D)),
        }
    _A_in = _A_setup()

    def _B_setup():
        B, S, D = 1, 2048, 448
        return {
            "x": _w((lambda *s: torch.randn(*s, dtype=torch.bfloat16) * 0.4)(B, S, D)),
            "wqkv": _w((lambda *s: torch.randn(*s, dtype=torch.bfloat16) * 0.4)(D, 3 * D)),
            "wo": _w((lambda *s: torch.randn(*s, dtype=torch.bfloat16) * 0.05)(D, D)),
        }
    _B_in = _B_setup()

    return {
        "A_x": _A_in["x"],
        "A_wqkv": _A_in["wqkv"],
        "A_wo": _A_in["wo"],
        "B_x": _B_in["x"],
        "B_wqkv": _B_in["wqkv"],
        "B_wo": _B_in["wo"],
    }

def reference(A_x, A_wqkv, A_wo, B_x, B_wqkv, B_wo):
    def _A_ref(x, wqkv, wo):
        B, S, D = x.shape
        H = 16; Dh = D // H; W = 256
        qkv = (lambda x, *d: x.permute(*d))((x @ wqkv).reshape(B, S, 3, H, Dh), 2, 0, 3, 1, 4)
        q, k, v = qkv[0], qkv[1], qkv[2]
        scores = torch.einsum("bhqd,bhkd->bhqk", q, k) * (Dh ** -0.5)
        idx = torch.arange(S)
        mask = (idx[:, None] - idx[None, :] >= 0) & (idx[:, None] - idx[None, :] < W)
        scores = torch.where(mask[None, None], scores, -1e9)
        p = _softmax(scores, axis=-1)
        o = torch.einsum("bhqk,bhkd->bhqd", p, v)
        return (lambda x, *d: x.permute(*d))(o, 0, 2, 1, 3).reshape(B, S, D) @ wo

    def _B_ref(x, wqkv, wo):
        B, S, D = x.shape
        H = 16; Dh = D // H; W = 256
        qkv = (lambda x, *d: x.permute(*d))((x @ wqkv).reshape(B, S, 3, H, Dh), 2, 0, 3, 1, 4)
        q, k, v = qkv[0], qkv[1], qkv[2]
        scores = torch.einsum("bhqd,bhkd->bhqk", q, k) * (Dh ** -0.5)
        idx = torch.arange(S)
        mask = (idx[:, None] - idx[None, :] >= 0) & (idx[:, None] - idx[None, :] < W)
        scores = torch.where(mask[None, None], scores, -1e9)
        p = _softmax(scores, axis=-1)
        o = torch.einsum("bhqk,bhkd->bhqd", p, v)
        return (lambda x, *d: x.permute(*d))(o, 0, 2, 1, 3).reshape(B, S, D) @ wo

    a = _A_ref(A_x, A_wqkv, A_wo)
    b = _B_ref(B_x, B_wqkv, B_wo)
    return torch.concatenate([a, b], axis=-1)
```

```python
import re

_REG = re.compile(r'(?<![\w.])([va])(?:(\d+)|\[(\d+):(\d+)\])')
_SREG = re.compile(r'(?<![\w.])s(?:(\d+)|\[(\d+):(\d+)\])')
TRANS = ('v_exp_f32', 'v_log_f32', 'v_rcp_f32', 'v_rsq_f32', 'v_sqrt_f32', 'v_sin_f32', 'v_cos_f32')


def regs_of(tok):
    out = []
    for m in _REG.finditer(tok):
        k = m.group(1)
        if m.group(2) is not None:
            out.append((k, int(m.group(2))))
        else:
            out += [(k, i) for i in range(int(m.group(3)), int(m.group(4)) + 1)]
    return out


def sregs_of(tok):
    out = []
    for m in _SREG.finditer(tok):
        if m.group(1) is not None:
            out.append(int(m.group(1)))
        else:
            out += list(range(int(m.group(2)), int(m.group(3)) + 1))
    if re.search(r'\bvcc\b', tok):
        out += [106, 107]
    return out


def split_ops(s):
    ops, depth, cur = [], 0, ''
    for ch in s:
        if ch == '[':
            depth += 1
        if ch == ']':
            depth -= 1
        if ch == ',' and depth == 0:
            ops.append(cur.strip())
            cur = ''
        else:
            cur += ch
    if cur.strip():
        ops.append(cur.strip())
    return ops


class Asm:
    def __init__(self):
        self.lines = []
        self.reset_hazards()
        self.maxv = -1
        self.maxa = -1
        self.maxs = -1
        self.n_inst = 0

    def reset_hazards(self):
        self.t = 0
        self.valu_w = {}
        self.trans_w = {}
        self.mfma_w = {}
        self.mfma_c = {}
        self.store_r = {}
        self.valu_sw = {}
        self.m0_w = -100

    def comment(self, s):
        self.lines.append('    ; ' + s)

    def label(self, s):
        self.lines.append(s + ':')

    def text(self, s):
        self.lines.append(s)

    def nop(self, n):
        while n > 0:
            k = min(n, 16)
            self.lines.append('    s_nop %d' % (k - 1))
            self.t += k
            self.n_inst += 1
            n -= k

    def __call__(self, s):
        s = s.strip()
        mn, _, rest = s.partition(' ')
        ops = split_ops(rest)
        need = 0

        def req(t0, ws):
            nonlocal need
            need = max(need, t0 + 1 + ws)

        is_mfma = mn.startswith('v_mfma')
        is_valu = mn.startswith('v_') and not is_mfma
        is_vmem = mn.startswith('buffer_') or mn.startswith('global_')
        is_ds = mn.startswith('ds_')
        vr, vw = [], []
        sr, sw = [], []
        if is_mfma:
            D, A, B, C = [regs_of(o) for o in ops[:4]]
            passes = 4 if '16x16x32' in mn else (8 if '32x32x16' in mn else None)
            assert passes
            for r in A + B:
                if r in self.valu_w: req(self.valu_w[r], 2)
                if r in self.mfma_w:
                    t0, p, _ = self.mfma_w[r]
                    req(t0, {4: 8, 8: 12}[p])
            for r in C:
                if r in self.valu_w: req(self.valu_w[r], 2)
                if r in self.mfma_w:
                    t0, p, dt = self.mfma_w[r]
                    if dt == tuple(C) and p == passes:
                        pass
                    else:
                        req(t0, {4: 6, 8: 10}[p])
            for r in D:
                if r in self.mfma_w and r not in C:
                    t0, p, dt = self.mfma_w[r]
                    req(t0, {4: 8, 8: 12}[p])
                if r in self.store_r: req(self.store_r[r], 2)
            vr, vw = A + B + C, D
        elif is_valu:
            if 'swap' in mn:
                vw = regs_of(ops[0]) + regs_of(ops[1])
                vr = list(vw)
                for r in vr:
                    if r in self.valu_w: req(self.valu_w[r], 2)
            elif mn.startswith('v_cmp'):
                sw = sregs_of(ops[0])
                for o in ops[1:]:
                    vr += regs_of(o); sr += sregs_of(o)
            elif mn.startswith('v_readfirstlane') or mn.startswith('v_readlane'):
                sw = sregs_of(ops[0])
                vr = regs_of(ops[1])
                for r in vr:
                    if r in self.valu_w: req(self.valu_w[r], 1)
            else:
                vw = regs_of(ops[0])
                for o in ops[1:]:
                    vr += regs_of(o); sr += sregs_of(o)
                if mn.startswith('v_fmac') or mn.startswith('v_pk_fmac'):
                    vr += vw
                if 'dpp' in s:
                    for r in vr:
                        if r in self.valu_w: req(self.valu_w[r], 2)
            for r in set(vr + vw):
                if r in self.mfma_w:
                    t0, p, _ = self.mfma_w[r]
                    req(t0, {4: 8, 8: 12}[p])
            for r in vw:
                if r in self.mfma_c:
                    t0, p = self.mfma_c[r]
                    req(t0, {4: 3, 8: 7}[p])
                if r in self.store_r: req(self.store_r[r], 2)
            if mn not in TRANS:
                for r in vr:
                    if r in self.trans_w: req(self.trans_w[r], 1)
            for r in sr:
                if r in self.valu_sw: req(self.valu_sw[r], 2)
        elif is_vmem or is_ds:
            is_lds_dma = is_vmem and re.search(r'\blds\b', s) is not None
            is_store = ('store' in mn) or mn.startswith('ds_write') or ('atomic' in mn)
            allops = ops
            if is_store or is_lds_dma:
                for o in allops: vr += regs_of(o)
            else:
                vw = regs_of(ops[0])
                for o in ops[1:]: vr += regs_of(o)
            for o in allops: sr += sregs_of(o)
            for r in set(vr + vw):
                if r in self.mfma_w:
                    t0, p, _ = self.mfma_w[r]
                    req(t0, {4: 8, 8: 12}[p])
            for r in vw:
                if r in self.store_r: req(self.store_r[r], 1)
                if r in self.mfma_c:
                    t0, p = self.mfma_c[r]
                    req(t0, {4: 3, 8: 7}[p])
            for r in vr:
                if r in self.trans_w: req(self.trans_w[r], 1)
            if is_vmem:
                for r in sr:
                    if r in self.valu_sw: req(self.valu_sw[r], 5)
            if is_lds_dma:
                req(self.m0_w, 1)
        else:
            if ops:
                for o in ops: sr += sregs_of(o)
            for r in sr:
                if r in self.valu_sw: req(self.valu_sw[r], 2)
        if need > self.t:
            self.nop(need - self.t)
        self.lines.append('    ' + s)
        self.n_inst += 1
        t = self.t
        self.t += 1
        for k, i in vr + vw:
            if k == 'v': self.maxv = max(self.maxv, i)
            else: self.maxa = max(self.maxa, i)
        for i in sregs_of(rest):
            if i < 102: self.maxs = max(self.maxs, i)
        for r in vw:
            self.valu_w.pop(r, None); self.trans_w.pop(r, None); self.mfma_w.pop(r, None)
        if is_mfma:
            for r in D: self.mfma_w[r] = (t, passes, tuple(D))
            for r in C: self.mfma_c[r] = (t, passes)
        elif is_valu:
            for r in vw:
                self.valu_w[r] = t
                if mn in TRANS: self.trans_w[r] = t
            for r in sw: self.valu_sw[r] = t
        elif is_vmem and ('store' in mn) and ('x4' in mn or 'x3' in mn):
            for r in regs_of(ops[0]): self.store_r[r] = t
        if not is_valu and not is_mfma and not is_vmem and not is_ds and ops and ops[0] == 'm0':
            self.m0_w = t

    def out(self):
        return '\n'.join(self.lines) + '\n'
```

```python
import sys, math
from asmdsl import Asm

NAME = 'concat_heads__sliding_block__sliding_block__prompt'
S, D, H, DH = 2048, 448, 16, 28
QKV_PITCH = 3 * D * 2
QKV_BR = S * QKV_PITCH
O_OFF = 2 * QKV_BR
O_BR = S * D * 2
X_BYTES = S * D * 2
OUT_BYTES = S * 2 * D * 2


class Ctr:
    def __init__(self, a, name, maxv):
        self.a, self.name, self.maxv = a, name, maxv
        self.issued = 0
        self.done = 0
    def issue(self):
        self.issued += 1
        return self.issued
    def wait(self, seq):
        if seq <= self.done:
            return
        n = self.issued - seq
        assert n <= self.maxv, (self.name, n)
        self.a('s_waitcnt %s(%d)' % (self.name, n))
        self.done = seq


def prologue_ptrs(a):
    a('s_load_dwordx16 s[4:19], s[0:1], 0')
    a('s_load_dwordx2 s[20:21], s[0:1], 64')


def srd(a, d, lo, hi, size):
    a('s_mov_b32 s%d, %s' % (d, lo))
    a('s_and_b32 s%d, %s, 0xffff' % (d + 1, hi))
    a('s_mov_b32 s%d, %s' % (d + 2, size))
    a('s_mov_b32 s%d, 0x00020000' % (d + 3))


def gemm(a, kname, which):
    if which == 1:
        NW, NTP, NB, MBX, ROWS, WP, OP = 8, 3, 14, 2, 256, QKV_PITCH, QKV_PITCH
        divm, divs = 37, 9
        WBYTES = D * QKV_PITCH
    else:
        NW, NTP, NB, MBX, ROWS, WP, OP = 4, 2, 7, 4, 128, D * 2, 2 * D * 2
        divm, divs = 37, 8
        WBYTES = D * D * 2
    NWG = 8 * NB * MBX
    NKS = 14
    EOFF = NKS * NTP * 1024 + 8
    DUMMY = 2 * NKS * NTP * 1024 + 16
    LDS = DUMMY + 1024
    NF = 2 * NTP
    a.reset_hazards()
    vm = Ctr(a, 'vmcnt', 63)
    lg = Ctr(a, 'lgkmcnt', 15)
    a.text('.p2align 8')
    a.text('.globl %s' % kname)
    a.text('.type %s,@function' % kname)
    a.label(kname)
    a('s_cmp_ge_u32 s2, %d' % NWG)
    a('s_cbranch_scc1 L_end_%s' % kname)
    prologue_ptrs(a)
    a('v_lshrrev_b32 v1, 6, v0')
    a('v_and_b32 v2, 63, v0')
    a('v_readfirstlane_b32 s40, v1')
    a('s_and_b32 s36, s2, 7')
    a('s_lshr_b32 s37, s2, 3')
    a('s_lshr_b32 s38, s36, 2')
    a('s_and_b32 s36, s36, 3')
    a('s_mul_i32 s39, s37, %d' % divm)
    a('s_lshr_b32 s39, s39, %d' % divs)
    a('s_mul_i32 s41, s39, %d' % NB)
    a('s_sub_u32 s41, s37, s41')
    a('s_mul_i32 s42, s36, %d' % MBX)
    a('s_add_u32 s42, s42, s39')
    a('s_mul_i32 s43, s42, %d' % ROWS)
    a('s_lshl_b32 s44, s40, 5')
    a('s_add_u32 s43, s43, s44')
    a('s_mul_i32 s47, s41, %d' % (NTP * 64))
    a('v_and_b32 v3, 15, v2')
    a('v_lshrrev_b32 v4, 4, v2')
    a('v_add_u32 v5, s43, v3')
    a('v_mul_u32_u24 v6, %d, v5' % (D * 2))
    a('v_lshl_add_u32 v6, v4, 4, v6')
    a('s_mov_b32 s44, %d' % (16 * D * 2))
    a('v_mul_u32_u24 v7, %d, v5' % OP)
    a('v_lshl_add_u32 v7, v4, 4, v7')
    a('v_add_u32 v7, s47, v7')
    a('s_mov_b32 s48, %d' % (16 * OP))
    a('s_cmp_ge_u32 s40, %d' % NTP)
    a('s_cselect_b32 s49, 1, 0')
    a('s_mul_i32 s50, s49, %d' % NTP)
    a('s_sub_u32 s50, s40, s50')
    a('v_lshrrev_b32 v8, 2, v2')
    a('v_and_b32 v9, 7, v8')
    a('v_lshrrev_b32 v8, 3, v8')
    a('v_lshl_add_u32 v9, v8, 4, v9')
    a('s_lshl_b32 s51, s49, 3')
    a('v_add_u32 v9, s51, v9')
    a('v_mul_u32_u24 v9, %d, v9' % WP)
    a('v_and_b32 v8, 3, v2')
    a('v_lshl_add_u32 v9, v8, 4, v9')
    a('s_lshl_b32 s51, s50, 6')
    a('s_add_u32 s51, s51, s47')
    a('v_add_u32 v9, s51, v9')
    a('s_mul_i32 s45, s49, %d' % EOFF)
    a('s_lshl_b32 s51, s50, 10')
    a('s_add_u32 s45, s45, s51')
    a('s_mov_b32 s46, %d' % (NTP * 1024))
    if NW > 2 * NTP:
        a('s_cmp_ge_u32 s40, %d' % (2 * NTP))
        a('s_cselect_b32 s45, %d, s45' % DUMMY)
        a('s_cselect_b32 s46, 0, s46')
        a('s_cselect_b32 s51, 0x7f000000, 0')
        a('v_or_b32 v9, s51, v9')
    a('v_and_b32 v10, 1, v4')
    a('v_mul_u32_u24 v10, %d, v10' % EOFF)
    a('v_lshrrev_b32 v11, 1, v4')
    a('v_lshl_add_u32 v10, v11, 9, v10')
    a('v_lshl_add_u32 v10, v3, 4, v10')
    a('s_waitcnt lgkmcnt(0)')
    a('s_cmp_eq_u32 s38, 0')
    if which == 1:
        a('s_cselect_b32 s52, s4, s10')
        a('s_cselect_b32 s53, s5, s11')
        a('s_cselect_b32 s54, s6, s12')
        a('s_cselect_b32 s55, s7, s13')
        srd(a, 24, 's52', 's53', str(X_BYTES))
        srd(a, 28, 's54', 's55', str(WBYTES))
        a('s_mul_i32 s56, s38, %d' % QKV_BR)
        a('s_add_u32 s52, s20, s56')
        a('s_addc_u32 s53, s21, 0')
        srd(a, 32, 's52', 's53', str(QKV_BR))
    else:
        a('s_cselect_b32 s54, s8, s14')
        a('s_cselect_b32 s55, s9, s15')
        srd(a, 28, 's54', 's55', str(WBYTES))
        a('s_mul_i32 s56, s38, %d' % O_BR)
        a('s_add_u32 s56, s56, %d' % O_OFF)
        a('s_add_u32 s52, s20, s56')
        a('s_addc_u32 s53, s21, 0')
        srd(a, 24, 's52', 's53', str(O_BR))
        a('s_mul_i32 s56, s38, %d' % (D * 2))
        a('s_add_u32 s52, s16, s56')
        a('s_addc_u32 s53, s17, 0')
        a('s_sub_u32 s57, %d, s56' % OUT_BYTES)
        srd(a, 32, 's52', 's53', 's57')
    XB = 16
    WB = XB + NKS * 8
    AC = WB + 2 * NF * 4
    def xr(ks, rt): b = XB + (ks * 2 + rt) * 4; return 'v[%d:%d]' % (b, b + 3)
    def wr(ks, f): b = WB + ((ks & 1) * NF + f) * 4; return b
    def ac(f, rt): b = AC + (f * 2 + rt) * 4; return b
    seq = {}
    a('s_mov_b32 s51, 0')
    for ks in range(NKS):
        a('s_mov_b32 m0, s45')
        a('buffer_load_dwordx4 v9, s[28:31], s51 offen lds'); vm.issue()
        a('buffer_load_dwordx4 %s, v6, s[24:27], 0 offen offset:%d' % (xr(ks, 0), ks * 64)); vm.issue()
        a('buffer_load_dwordx4 %s, v6, s[24:27], s44 offen offset:%d' % (xr(ks, 1), ks * 64)); seq[ks] = vm.issue()
        if ks + 1 < NKS:
            a('s_add_u32 s45, s45, s46')
            a('s_add_u32 s51, s51, %d' % (32 * WP))
    rseq = {}
    def reads(ks, f):
        tp, t = f >> 1, f & 1
        b = wr(ks, f)
        off = (ks * NTP + tp) * 1024 + 8 * t
        a('ds_read_b64_tr_b16 v[%d:%d], v10 offset:%d' % (b, b + 1, off)); lg.issue()
        a('ds_read_b64_tr_b16 v[%d:%d], v10 offset:%d' % (b + 2, b + 3, off + 256)); rseq[(ks, f)] = lg.issue()
    vm.wait(seq[1]); a('s_barrier')
    for f in range(NF): reads(0, f)
    for ks in range(NKS):
        if ks + 1 < NKS and (ks + 1) % 2 == 0:
            vm.wait(seq[ks + 2]); a('s_barrier')
        for f in range(NF):
            lg.wait(rseq[(ks, f)])
            b = wr(ks, f)
            for rt in range(2):
                c = ac(f, rt)
                cs = '0' if ks == 0 else 'v[%d:%d]' % (c, c + 3)
                a('v_mfma_f32_16x16x32_bf16 v[%d:%d], v[%d:%d], %s, %s' % (c, c + 3, b, b + 3, xr(ks, rt), cs))
            if ks + 1 < NKS:
                reads(ks + 1, f)
    for tp in range(NTP):
        for rt in range(2):
            c0, c1 = ac(2 * tp, rt), ac(2 * tp + 1, rt)
            o = XB + (tp * 2 + rt) * 4
            a('v_cvt_pk_bf16_f32 v%d, v%d, v%d' % (o, c0, c0 + 1))
            a('v_cvt_pk_bf16_f32 v%d, v%d, v%d' % (o + 1, c0 + 2, c0 + 3))
            a('v_cvt_pk_bf16_f32 v%d, v%d, v%d' % (o + 2, c1, c1 + 1))
            a('v_cvt_pk_bf16_f32 v%d, v%d, v%d' % (o + 3, c1 + 2, c1 + 3))
            a('buffer_store_dwordx4 v[%d:%d], v7, s[32:35], %s offen offset:%d' % (o, o + 3, 's48' if rt else '0', tp * 64))
    a.label('L_end_%s' % kname)
    a('s_endpgm')
    return dict(name=kname, grid=NWG, block=NW * 64, lds=LDS)


def attn(a, kname):
    NWG = 256
    KB, VB = 0, 32768
    LDS = 65536
    CS = (DH ** -0.5) * math.log2(math.e)
    import struct
    cbits = struct.unpack('<I', struct.pack('<f', CS))[0]
    a.reset_hazards()
    vm = Ctr(a, 'vmcnt', 63)
    lg = Ctr(a, 'lgkmcnt', 15)
    a.text('.p2align 8')
    a.text('.globl %s' % kname)
    a.text('.type %s,@function' % kname)
    a.label(kname)
    a('s_cmp_ge_u32 s2, %d' % NWG)
    a('s_cbranch_scc1 L_end_%s' % kname)
    prologue_ptrs(a)
    a('v_lshrrev_b32 v1, 6, v0')
    a('v_and_b32 v2, 63, v0')
    a('v_readfirstlane_b32 s40, v1')
    a('s_and_b32 s36, s2, 7')
    a('s_lshr_b32 s37, s2, 3')
    a('s_lshr_b32 s38, s36, 2')
    a('s_and_b32 s36, s36, 3')
    a('s_and_b32 s39, s37, 15')
    a('s_lshr_b32 s41, s37, 4')
    a('s_lshl_b32 s42, s36, 1')
    a('s_add_u32 s42, s42, s41')
    a('s_lshl_b32 s43, s42, 8')
    a('s_mul_i32 s44, s39, %d' % (DH * 2))
    a('v_and_b32 v3, 15, v2')
    a('v_lshrrev_b32 v4, 4, v2')
    a('v_lshrrev_b32 v5, 2, v2')
    a('s_lshl_b32 s45, s40, 6')
    a('s_add_u32 s45, s45, s43')
    a('s_sub_u32 s45, s45, 256')
    a('v_add_u32 v5, s45, v5')
    a('s_mov_b32 s46, %d' % QKV_PITCH)
    a('v_mul_lo_u32 v5, v5, s46')
    a('v_and_b32 v6, 3, v2')
    a('v_sub_u32 v7, 4, v4')
    a('v_and_b32 v7, 3, v7')
    a('v_xor_b32 v7, v7, v6')
    a('v_lshl_add_u32 v7, v7, 4, v5')
    a('s_add_u32 s47, s44, %d' % (D * 2))
    a('v_add_u32 v7, s47, v7')
    a('v_and_b32 v8, 1, v4')
    a('v_lshlrev_b32 v8, 1, v8')
    a('v_xor_b32 v8, v8, v6')
    a('v_lshl_add_u32 v8, v8, 4, v5')
    a('s_add_u32 s47, s44, %d' % (2 * D * 2))
    a('v_add_u32 v8, s47, v8')
    a('s_lshl_b32 s48, s40, 5')
    a('s_add_u32 s49, s48, s43')
    a('v_add_u32 v9, s49, v3')
    a('v_mul_u32_u24 v10, %d, v9' % QKV_PITCH)
    a('v_lshl_add_u32 v10, v4, 4, v10')
    a('v_add_u32 v10, s44, v10')
    a('s_mov_b32 s50, %d' % (16 * QKV_PITCH))
    a('v_mul_u32_u24 v11, %d, v9' % (D * 2))
    a('v_lshl_add_u32 v11, v4, 3, v11')
    a('v_add_u32 v11, s44, v11')
    a('s_mov_b32 s51, %d' % (16 * D * 2))
    a('v_lshrrev_b32 v12, 2, v3')
    a('v_sub_u32 v12, 4, v12')
    a('v_and_b32 v12, 3, v12')
    a('v_xor_b32 v12, v12, v4')
    a('v_lshlrev_b32 v12, 4, v12')
    a('v_add_u32 v13, s48, v3')
    a('v_lshl_add_u32 v12, v13, 6, v12')
    a('v_lshrrev_b32 v13, 2, v2')
    a('v_add_u32 v13, s48, v13')
    a('v_lshlrev_b32 v13, 6, v13')
    a('v_add_u32 v13, %d, v13' % VB)
    a('v_lshrrev_b32 v14, 1, v6')
    a('v_and_b32 v15, 1, v4')
    a('v_lshlrev_b32 v15, 1, v15')
    a('v_xor_b32 v14, v14, v15')
    a('v_lshl_add_u32 v13, v14, 4, v13')
    a('v_and_b32 v14, 1, v6')
    a('v_lshl_add_u32 v13, v14, 3, v13')
    a('v_xor_b32 v14, 32, v13')
    a('s_waitcnt lgkmcnt(0)')
    a('s_mul_i32 s56, s38, %d' % QKV_BR)
    a('s_add_u32 s52, s20, s56')
    a('s_addc_u32 s53, s21, 0')
    srd(a, 24, 's52', 's53', str(QKV_BR))
    a('s_mul_i32 s56, s38, %d' % O_BR)
    a('s_add_u32 s56, s56, %d' % O_OFF)
    a('s_add_u32 s52, s20, s56')
    a('s_addc_u32 s53, s21, 0')
    srd(a, 28, 's52', 's53', str(O_BR))
    SA, SB = 16, 84
    FR = 152
    QA, QB_, MLO, MHI = 224, 228, 232, 236
    OA = 224
    LA = 240
    ONES = 248
    def sa(t): return SA + 4 * t
    def sb(t): return SB + 4 * (t - 1)
    a('buffer_load_dwordx4 v[%d:%d], v10, s[24:27], 0 offen' % (QA, QA + 3)); vm.issue()
    a('buffer_load_dwordx4 v[%d:%d], v10, s[24:27], s50 offen' % (QB_, QB_ + 3)); qseq = vm.issue()
    a('s_lshl_b32 s47, s40, 12')
    for i in range(4):
        a('s_add_u32 s54, s47, %d' % (KB + i * 1024))
        a('s_mov_b32 m0, s54')
        a('buffer_load_dwordx4 v7, s[24:27], 0 offen lds'); vm.issue()
        a('s_add_u32 s54, s47, %d' % (VB + i * 1024))
        a('s_mov_b32 m0, s54')
        a('buffer_load_dwordx4 v8, s[24:27], 0 offen lds'); vm.issue()
        if i < 3:
            a('v_add_u32 v7, %d, v7' % (16 * QKV_PITCH))
            a('v_add_u32 v8, %d, v8' % (16 * QKV_PITCH))
    a('v_lshlrev_b32 v5, 2, v4')
    a('v_mov_b32 v6, 0xff800000')
    for j in range(4):
        a('v_add_u32 v15, %d, v5' % j)
        a('v_cmp_gt_u32 vcc, v15, v3')
        a('v_cndmask_b32 v%d, v6, 0, vcc' % (MLO + j))
        a('v_cndmask_b32 v%d, 0, v6, vcc' % (MHI + j))
    for j in range(4):
        a('v_mov_b32 v%d, 0x3f803f80' % (ONES + j))
    a('s_mov_b32 s55, 0x%08x' % cbits)
    vm.wait(qseq)
    a('v_cmp_gt_u32 vcc, 3, v4')
    for q in (QA, QB_):
        a('v_cndmask_b32 v%d, 0, v%d, vcc' % (q + 2, q + 2))
        a('v_cndmask_b32 v%d, 0, v%d, vcc' % (q + 3, q + 3))
    vm.wait(vm.issued)
    a('s_barrier')
    kseq = {}
    def kread(t):
        b = FR + 4 * t
        a('ds_read_b128 v[%d:%d], v12 offset:%d' % (b, b + 3, KB + t * 1024)); kseq[t] = lg.issue()
    for t in range(12): kread(t)
    for t in range(18):
        lg.wait(kseq[t])
        b = FR + 4 * t
        if t <= 16:
            c = 'v[%d:%d]' % (MLO, MLO + 3) if t == 0 else ('v[%d:%d]' % (MHI, MHI + 3) if t == 16 else '0')
            a('v_mfma_f32_16x16x32_bf16 v[%d:%d], v[%d:%d], v[%d:%d], %s' % (sa(t), sa(t) + 3, b, b + 3, QA, QA + 3, c))
        if t >= 1:
            c = 'v[%d:%d]' % (MLO, MLO + 3) if t == 1 else ('v[%d:%d]' % (MHI, MHI + 3) if t == 17 else '0')
            a('v_mfma_f32_16x16x32_bf16 v[%d:%d], v[%d:%d], v[%d:%d], %s' % (sb(t), sb(t) + 3, b, b + 3, QB_, QB_ + 3, c))
        if t + 12 < 18: kread(t + 12)
    vseq = {}
    def vread(u, dt):
        b = FR + (u * 2 + dt) * 4
        ad = 'v13' if dt == 0 else 'v14'
        a('ds_read_b64_tr_b16 v[%d:%d], %s offset:%d' % (b, b + 1, ad, (2 * u) * 1024)); lg.issue()
        a('ds_read_b64_tr_b16 v[%d:%d], %s offset:%d' % (b + 2, b + 3, ad, (2 * u + 1) * 1024)); vseq[(u, dt)] = lg.issue()
    a('s_cmp_lg_u32 s42, 0')
    a('s_cbranch_scc1 L_nofix_%s' % kname)
    a.nop(10)
    a('s_lshl_b32 s54, s40, 1')
    for t in range(16):
        a('s_cmp_ge_u32 s54, %d' % (16 - t))
        a('s_cbranch_scc1 L_nofix_%s' % kname)
        for j in range(4):
            a('v_mov_b32 v%d, v6' % (sa(t) + j))
            if t >= 1: a('v_mov_b32 v%d, v6' % (sb(t) + j))
    a.label('L_nofix_%s' % kname)
    a.nop(10)
    for u in range(3):
        vread(u, 0); vread(u, 1)
    MA, MB_, TA, TB = 5, 6, 7, 8
    def tiles(q): return [sa(t) for t in range(17)] if q == 0 else [sb(t) for t in range(1, 18)]
    for q, m in ((0, MA), (1, MB_)):
        regs = [r + j for r in tiles(q) for j in range(4)]
        a('v_max3_f32 v%d, v%d, v%d, v%d' % (m, regs[0], regs[1], regs[2]))
        i = 3
        while i + 1 < len(regs):
            a('v_max3_f32 v%d, v%d, v%d, v%d' % (m, m, regs[i], regs[i + 1])); i += 2
        if i < len(regs):
            a('v_max_f32 v%d, v%d, v%d' % (m, m, regs[i]))
    for swp in ('v_permlane32_swap_b32', 'v_permlane16_swap_b32'):
        a('v_mov_b32 v%d, v%d' % (TA, MA))
        a('v_mov_b32 v%d, v%d' % (TB, MB_))
        a('%s v%d, v%d' % (swp, TA, MA))
        a('%s v%d, v%d' % (swp, TB, MB_))
        a('v_max_f32 v%d, v%d, v%d' % (MA, MA, TA))
        a('v_max_f32 v%d, v%d, v%d' % (MB_, MB_, TB))
    a('v_mul_f32 v%d, s55, v%d' % (MA, MA))
    a('v_mul_f32 v%d, s55, v%d' % (MB_, MB_))
    def expo(r, m):
        for j in range(4):
            a('v_fma_f32 v%d, v%d, s55, -v%d' % (r + j, r + j, m))
        for j in range(4):
            a('v_exp_f32 v%d, v%d' % (r + j, r + j))
    for u in range(9):
        P = {}
        for q, m in ((0, MA), (1, MB_)):
            f = sa if q == 0 else sb
            t0, t1 = 2 * u, 2 * u + 1
            has0 = (t0 <= 16) if q == 0 else (t0 >= 1)
            has1 = (t1 <= 16) if q == 0 else True
            if has0 and has1:
                r0, r1 = f(t0), f(t1)
                expo(r0, m); expo(r1, m)
                a('v_cvt_pk_bf16_f32 v%d, v%d, v%d' % (r0, r0, r0 + 1))
                a('v_cvt_pk_bf16_f32 v%d, v%d, v%d' % (r0 + 1, r0 + 2, r0 + 3))
                a('v_cvt_pk_bf16_f32 v%d, v%d, v%d' % (r0 + 2, r1, r1 + 1))
                a('v_cvt_pk_bf16_f32 v%d, v%d, v%d' % (r0 + 3, r1 + 2, r1 + 3))
                P[q] = r0
            elif has0:
                r0 = f(t0)
                expo(r0, m)
                a('v_cvt_pk_bf16_f32 v%d, v%d, v%d' % (r0, r0, r0 + 1))
                a('v_cvt_pk_bf16_f32 v%d, v%d, v%d' % (r0 + 1, r0 + 2, r0 + 3))
                a('v_mov_b32 v%d, 0' % (r0 + 2))
                a('v_mov_b32 v%d, 0' % (r0 + 3))
                P[q] = r0
            else:
                r1 = f(t1)
                expo(r1, m)
                a('v_cvt_pk_bf16_f32 v%d, v%d, v%d' % (r1 + 3, r1 + 2, r1 + 3))
                a('v_cvt_pk_bf16_f32 v%d, v%d, v%d' % (r1 + 2, r1, r1 + 1))
                a('v_mov_b32 v%d, 0' % r1)
                a('v_mov_b32 v%d, 0' % (r1 + 1))
                P[q] = r1
        lg.wait(vseq[(u, 1)])
        for q in range(2):
            p = P[q]
            for dt in range(2):
                b = FR + (u * 2 + dt) * 4
                o = OA + (q * 2 + dt) * 4
                c = '0' if u == 0 else 'v[%d:%d]' % (o, o + 3)
                a('v_mfma_f32_16x16x32_bf16 v[%d:%d], v[%d:%d], v[%d:%d], %s' % (o, o + 3, b, b + 3, p, p + 3, c))
            l = LA + q * 4
            c = '0' if u == 0 else 'v[%d:%d]' % (l, l + 3)
            a('v_mfma_f32_16x16x32_bf16 v[%d:%d], v[%d:%d], v[%d:%d], %s' % (l, l + 3, ONES, ONES + 3, p, p + 3, c))
        if u + 3 < 9:
            vread(u + 3, 0); vread(u + 3, 1)
    a('v_cmp_gt_u32 vcc, 3, v4')
    a('v_mov_b32 v5, 0x7f000000')
    a('v_cndmask_b32 v15, v5, v11, vcc')
    for q in range(2):
        l = LA + q * 4
        a('v_rcp_f32 v%d, v%d' % (l, l))
    for q in range(2):
        l = LA + q * 4
        for dt in range(2):
            o = OA + (q * 2 + dt) * 4
            for j in range(4):
                a('v_mul_f32 v%d, v%d, v%d' % (o + j, o + j, l))
            a('v_cvt_pk_bf16_f32 v%d, v%d, v%d' % (o, o, o + 1))
            a('v_cvt_pk_bf16_f32 v%d, v%d, v%d' % (o + 1, o + 2, o + 3))
            a('buffer_store_dwordx2 v[%d:%d], %s, s[28:31], %s offen offset:%d' % (o, o + 1, 'v11' if dt == 0 else 'v15', 's51' if q else '0', dt * 32))
    a.label('L_end_%s' % kname)
    a('s_endpgm')
    return dict(name=kname, grid=NWG, block=512, lds=LDS)


HEADER = open('cdna_kernels/%s.s.ref' % NAME).read().split('; Override launch')[0]


def build():
    ks = []
    bodies = []
    for fn in (lambda a: gemm(a, 'qkv_kernel', 1), lambda a: attn(a, 'attn_kernel'), lambda a: gemm(a, 'proj_kernel', 3)):
        a = Asm()
        info = fn(a)
        info['vgpr'] = a.maxv + 1
        info['sgpr'] = a.maxs + 1
        info['n'] = a.n_inst
        ks.append(info)
        bodies.append(a.out())
    out = HEADER
    for k in ks:
        out += '; @launch kernel=%s grid=(%d,1,1) block=(%d,1,1) lds=%d\n' % (k['name'], k['grid'], k['block'], k['lds'])
    out += '.amdgcn_target "amdgcn-amd-amdhsa--gfx950"\n.text\n'
    out += ''.join(bodies)
    out += '.section .rodata,"a"\n'
    for k in ks:
        v = k['vgpr']
        out += '''.p2align 6
.amdhsa_kernel %s
  .amdhsa_next_free_vgpr %d
  .amdhsa_next_free_sgpr %d
  .amdhsa_accum_offset %d
  .amdhsa_group_segment_fixed_size 0
  .amdhsa_kernarg_size 72
  .amdhsa_user_sgpr_count 2
  .amdhsa_user_sgpr_kernarg_segment_ptr 1
  .amdhsa_system_sgpr_workgroup_id_x 1
.end_amdhsa_kernel
''' % (k['name'], v, max(k['sgpr'], 16), (v + 3) // 4 * 4)
    for k in ks:
        print(k, file=sys.stderr)
    return out


if __name__ == '__main__':
    dst = sys.argv[1] if len(sys.argv) > 1 else 'cdna_kernels/%s.s' % NAME
    open(dst, 'w').write(build())
```

```python
import sys, math
from asmdsl import Asm

NAME = 'concat_heads__sliding_block__sliding_block__prompt'
S, D, H, DH = 2048, 448, 16, 28
QKV_PITCH = 3 * D * 2
QKV_BR = S * QKV_PITCH
O_OFF = 2 * QKV_BR
O_BR = S * D * 2
X_BYTES = S * D * 2
OUT_BYTES = S * 2 * D * 2


class Ctr:
    def __init__(self, a, name, maxv):
        self.a, self.name, self.maxv = a, name, maxv
        self.issued = 0
        self.done = 0
    def issue(self):
        self.issued += 1
        return self.issued
    def wait(self, seq):
        if seq <= self.done:
            return
        n = self.issued - seq
        assert n <= self.maxv, (self.name, n)
        self.a('s_waitcnt %s(%d)' % (self.name, n))
        self.done = seq


STAMP = False
class Stamps:
    def __init__(self, a, lg):
        self.a = a; self.n = 0; self.lg = lg
    def __call__(self):
        if not STAMP: return
        r = 70 + 2 * self.n
        assert r + 1 < 102
        self.a('s_memtime s[%d:%d]' % (r, r + 1))
        self.a('s_waitcnt lgkmcnt(0)')
        self.lg.done = self.lg.issued
        self.n += 1
    def flush(self, kidx):
        if not STAMP: return
        a = self.a
        a('s_waitcnt vmcnt(0) lgkmcnt(0)')
        self()
        a('s_waitcnt lgkmcnt(0)')
        a('s_add_u32 s60, s20, 0x%x' % (0x2000000 + kidx * 0x100000))
        a('s_addc_u32 s61, s21, 0')
        srd(a, 24, 's60', 's61', '0x100000')
        a('s_lshl_b32 s60, s2, 3')
        a('s_add_u32 s60, s60, s40')
        a('s_lshl_b32 s60, s60, 7')
        for i in range(self.n):
            a('v_mov_b32 v1, s%d' % (70 + 2 * i))
            a('v_mov_b32 v2, %d' % (4 * i))
            a('buffer_store_dword v1, v2, s[24:27], s60 offen')


def prologue_ptrs(a):
    a('s_load_dwordx16 s[4:19], s[0:1], 0')
    a('s_load_dwordx2 s[20:21], s[0:1], 64')


def srd(a, d, lo, hi, size):
    a('s_mov_b32 s%d, %s' % (d, lo))
    a('s_and_b32 s%d, %s, 0xffff' % (d + 1, hi))
    a('s_mov_b32 s%d, %s' % (d + 2, size))
    a('s_mov_b32 s%d, 0x00020000' % (d + 3))


def gemm(a, kname, which):
    if which == 1:
        NW, NTP, NB, MBX, ROWS, WP, OP = 8, 3, 14, 2, 256, QKV_PITCH, QKV_PITCH
        divm, divs = 37, 9
        WBYTES = D * QKV_PITCH
    else:
        NW, NTP, NB, MBX, ROWS, WP, OP = 4, 2, 7, 4, 128, D * 2, 2 * D * 2
        divm, divs = 37, 8
        WBYTES = D * D * 2
    NWG = 8 * NB * MBX
    NKS = 14
    EOFF = NKS * NTP * 1024 + 8
    DUMMY = 2 * NKS * NTP * 1024 + 16
    LDS = DUMMY + 1024
    NF = 2 * NTP
    a.reset_hazards()
    vm = Ctr(a, 'vmcnt', 63)
    lg = Ctr(a, 'lgkmcnt', 15)
    a.text('.p2align 8')
    a.text('.globl %s' % kname)
    a.text('.type %s,@function' % kname)
    a.label(kname)
    a('s_cmp_ge_u32 s2, %d' % NWG)
    a('s_cbranch_scc1 L_end_%s' % kname)
    st = Stamps(a, lg)
    st()
    prologue_ptrs(a)
    a('v_lshrrev_b32 v1, 6, v0')
    a('v_and_b32 v2, 63, v0')
    a('v_readfirstlane_b32 s40, v1')
    a('s_and_b32 s36, s2, 7')
    a('s_lshr_b32 s37, s2, 3')
    a('s_lshr_b32 s38, s36, 2')
    a('s_and_b32 s36, s36, 3')
    a('s_mul_i32 s39, s37, %d' % divm)
    a('s_lshr_b32 s39, s39, %d' % divs)
    a('s_mul_i32 s41, s39, %d' % NB)
    a('s_sub_u32 s41, s37, s41')
    a('s_mul_i32 s42, s36, %d' % MBX)
    a('s_add_u32 s42, s42, s39')
    a('s_mul_i32 s43, s42, %d' % ROWS)
    a('s_lshl_b32 s44, s40, 5')
    a('s_add_u32 s43, s43, s44')
    a('s_mul_i32 s47, s41, %d' % (NTP * 64))
    a('v_and_b32 v3, 15, v2')
    a('v_lshrrev_b32 v4, 4, v2')
    a('v_add_u32 v5, s43, v3')
    a('v_mul_u32_u24 v6, %d, v5' % (D * 2))
    a('v_lshl_add_u32 v6, v4, 4, v6')
    a('s_mov_b32 s44, %d' % (16 * D * 2))
    a('v_mul_u32_u24 v7, %d, v5' % OP)
    a('v_lshl_add_u32 v7, v4, 4, v7')
    a('v_add_u32 v7, s47, v7')
    a('s_mov_b32 s48, %d' % (16 * OP))
    a('s_cmp_ge_u32 s40, %d' % NTP)
    a('s_cselect_b32 s49, 1, 0')
    a('s_mul_i32 s50, s49, %d' % NTP)
    a('s_sub_u32 s50, s40, s50')
    a('v_lshrrev_b32 v8, 2, v2')
    a('v_and_b32 v9, 7, v8')
    a('v_lshrrev_b32 v8, 3, v8')
    a('v_lshl_add_u32 v9, v8, 4, v9')
    a('s_lshl_b32 s51, s49, 3')
    a('v_add_u32 v9, s51, v9')
    a('v_mul_u32_u24 v9, %d, v9' % WP)
    a('v_and_b32 v8, 3, v2')
    a('v_lshl_add_u32 v9, v8, 4, v9')
    a('s_lshl_b32 s51, s50, 6')
    a('s_add_u32 s51, s51, s47')
    a('v_add_u32 v9, s51, v9')
    a('s_mul_i32 s45, s49, %d' % EOFF)
    a('s_lshl_b32 s51, s50, 10')
    a('s_add_u32 s45, s45, s51')
    a('s_mov_b32 s46, %d' % (NTP * 1024))
    if NW > 2 * NTP:
        a('s_cmp_ge_u32 s40, %d' % (2 * NTP))
        a('s_cselect_b32 s45, %d, s45' % DUMMY)
        a('s_cselect_b32 s46, 0, s46')
        a('s_cselect_b32 s51, 0x7f000000, 0')
        a('v_or_b32 v9, s51, v9')
    a('v_and_b32 v10, 1, v4')
    a('v_mul_u32_u24 v10, %d, v10' % EOFF)
    a('v_lshrrev_b32 v11, 1, v4')
    a('v_lshl_add_u32 v10, v11, 9, v10')
    a('v_lshl_add_u32 v10, v3, 4, v10')
    a('s_waitcnt lgkmcnt(0)')
    a('s_cmp_eq_u32 s38, 0')
    if which == 1:
        a('s_cselect_b32 s52, s4, s10')
        a('s_cselect_b32 s53, s5, s11')
        a('s_cselect_b32 s54, s6, s12')
        a('s_cselect_b32 s55, s7, s13')
        srd(a, 24, 's52', 's53', str(X_BYTES))
        srd(a, 28, 's54', 's55', str(WBYTES))
        a('s_mul_i32 s56, s38, %d' % QKV_BR)
        a('s_add_u32 s52, s20, s56')
        a('s_addc_u32 s53, s21, 0')
        srd(a, 32, 's52', 's53', str(QKV_BR))
    else:
        a('s_cselect_b32 s54, s8, s14')
        a('s_cselect_b32 s55, s9, s15')
        srd(a, 28, 's54', 's55', str(WBYTES))
        a('s_mul_i32 s56, s38, %d' % O_BR)
        a('s_add_u32 s56, s56, %d' % O_OFF)
        a('s_add_u32 s52, s20, s56')
        a('s_addc_u32 s53, s21, 0')
        srd(a, 24, 's52', 's53', str(O_BR))
        a('s_mul_i32 s56, s38, %d' % (D * 2))
        a('s_add_u32 s52, s16, s56')
        a('s_addc_u32 s53, s17, 0')
        a('s_sub_u32 s57, %d, s56' % OUT_BYTES)
        srd(a, 32, 's52', 's53', 's57')
    XB = 16
    WB = XB + NKS * 8
    AC = WB + 2 * NF * 4
    def xr(ks, rt): b = XB + (ks * 2 + rt) * 4; return 'v[%d:%d]' % (b, b + 3)
    def wr(ks, f): b = WB + ((ks & 1) * NF + f) * 4; return b
    def ac(f, rt): b = AC + (f * 2 + rt) * 4; return b
    st()
    seq = {}
    a('s_mov_b32 s51, 0')
    for ks in range(NKS):
        a('s_mov_b32 m0, s45')
        a('buffer_load_dwordx4 v9, s[28:31], s51 offen lds'); vm.issue()
        a('buffer_load_dwordx4 %s, v6, s[24:27], 0 offen offset:%d' % (xr(ks, 0), ks * 64)); vm.issue()
        a('buffer_load_dwordx4 %s, v6, s[24:27], s44 offen offset:%d' % (xr(ks, 1), ks * 64)); seq[ks] = vm.issue()
        if ks + 1 < NKS:
            a('s_add_u32 s45, s45, s46')
            a('s_add_u32 s51, s51, %d' % (32 * WP))
    rseq = {}
    def reads(ks, f):
        tp, t = f >> 1, f & 1
        b = wr(ks, f)
        off = (ks * NTP + tp) * 1024 + 8 * t
        a('ds_read_b64_tr_b16 v[%d:%d], v10 offset:%d' % (b, b + 1, off)); lg.issue()
        a('ds_read_b64_tr_b16 v[%d:%d], v10 offset:%d' % (b + 2, b + 3, off + 256)); rseq[(ks, f)] = lg.issue()
    st()
    vm.wait(seq[1]); a('s_barrier')
    st()
    for f in range(NF): reads(0, f)
    for ks in range(NKS):
        if ks + 1 < NKS and (ks + 1) % 2 == 0:
            vm.wait(seq[ks + 2]); a('s_barrier')
            st()
        for f in range(NF):
            lg.wait(rseq[(ks, f)])
            b = wr(ks, f)
            for rt in range(2):
                c = ac(f, rt)
                cs = '0' if ks == 0 else 'v[%d:%d]' % (c, c + 3)
                a('v_mfma_f32_16x16x32_bf16 v[%d:%d], v[%d:%d], %s, %s' % (c, c + 3, b, b + 3, xr(ks, rt), cs))
            if ks + 1 < NKS:
                reads(ks + 1, f)
    st()
    for tp in range(NTP):
        for rt in range(2):
            c0, c1 = ac(2 * tp, rt), ac(2 * tp + 1, rt)
            o = XB + (tp * 2 + rt) * 4
            a('v_cvt_pk_bf16_f32 v%d, v%d, v%d' % (o, c0, c0 + 1))
            a('v_cvt_pk_bf16_f32 v%d, v%d, v%d' % (o + 1, c0 + 2, c0 + 3))
            a('v_cvt_pk_bf16_f32 v%d, v%d, v%d' % (o + 2, c1, c1 + 1))
            a('v_cvt_pk_bf16_f32 v%d, v%d, v%d' % (o + 3, c1 + 2, c1 + 3))
            a('buffer_store_dwordx4 v[%d:%d], v7, s[32:35], %s offen offset:%d' % (o, o + 3, 's48' if rt else '0', tp * 64))
    st.flush(0 if which == 1 else 2)
    a.label('L_end_%s' % kname)
    a('s_endpgm')
    return dict(name=kname, grid=NWG, block=NW * 64, lds=LDS)


def attn(a, kname):
    NWG = 256
    KB, VB = 0, 32768
    LDS = 65536
    CS = (DH ** -0.5) * math.log2(math.e)
    import struct
    cbits = struct.unpack('<I', struct.pack('<f', CS))[0]
    a.reset_hazards()
    vm = Ctr(a, 'vmcnt', 63)
    lg = Ctr(a, 'lgkmcnt', 15)
    a.text('.p2align 8')
    a.text('.globl %s' % kname)
    a.text('.type %s,@function' % kname)
    a.label(kname)
    a('s_cmp_ge_u32 s2, %d' % NWG)
    a('s_cbranch_scc1 L_end_%s' % kname)
    st = Stamps(a, lg)
    st()
    prologue_ptrs(a)
    a('v_lshrrev_b32 v1, 6, v0')
    a('v_and_b32 v2, 63, v0')
    a('v_readfirstlane_b32 s40, v1')
    a('s_and_b32 s36, s2, 7')
    a('s_lshr_b32 s37, s2, 3')
    a('s_lshr_b32 s38, s36, 2')
    a('s_and_b32 s36, s36, 3')
    a('s_and_b32 s39, s37, 15')
    a('s_lshr_b32 s41, s37, 4')
    a('s_lshl_b32 s42, s36, 1')
    a('s_add_u32 s42, s42, s41')
    a('s_lshl_b32 s43, s42, 8')
    a('s_mul_i32 s44, s39, %d' % (DH * 2))
    a('v_and_b32 v3, 15, v2')
    a('v_lshrrev_b32 v4, 4, v2')
    a('v_lshrrev_b32 v5, 2, v2')
    a('s_lshl_b32 s45, s40, 6')
    a('s_add_u32 s45, s45, s43')
    a('s_sub_u32 s45, s45, 256')
    a('v_add_u32 v5, s45, v5')
    a('s_mov_b32 s46, %d' % QKV_PITCH)
    a('v_mul_lo_u32 v5, v5, s46')
    a('v_and_b32 v6, 3, v2')
    a('v_sub_u32 v7, 4, v4')
    a('v_and_b32 v7, 3, v7')
    a('v_xor_b32 v7, v7, v6')
    a('v_lshl_add_u32 v7, v7, 4, v5')
    a('s_add_u32 s47, s44, %d' % (D * 2))
    a('v_add_u32 v7, s47, v7')
    a('v_and_b32 v8, 1, v4')
    a('v_lshlrev_b32 v8, 1, v8')
    a('v_xor_b32 v8, v8, v6')
    a('v_lshl_add_u32 v8, v8, 4, v5')
    a('s_add_u32 s47, s44, %d' % (2 * D * 2))
    a('v_add_u32 v8, s47, v8')
    a('s_lshl_b32 s48, s40, 5')
    a('s_add_u32 s49, s48, s43')
    a('v_add_u32 v9, s49, v3')
    a('v_mul_u32_u24 v10, %d, v9' % QKV_PITCH)
    a('v_lshl_add_u32 v10, v4, 4, v10')
    a('v_add_u32 v10, s44, v10')
    a('s_mov_b32 s50, %d' % (16 * QKV_PITCH))
    a('v_mul_u32_u24 v11, %d, v9' % (D * 2))
    a('v_lshl_add_u32 v11, v4, 3, v11')
    a('v_add_u32 v11, s44, v11')
    a('s_mov_b32 s51, %d' % (16 * D * 2))
    a('v_lshrrev_b32 v12, 2, v3')
    a('v_sub_u32 v12, 4, v12')
    a('v_and_b32 v12, 3, v12')
    a('v_xor_b32 v12, v12, v4')
    a('v_lshlrev_b32 v12, 4, v12')
    a('v_add_u32 v13, s48, v3')
    a('v_lshl_add_u32 v12, v13, 6, v12')
    a('v_lshrrev_b32 v13, 2, v2')
    a('v_add_u32 v13, s48, v13')
    a('v_lshlrev_b32 v13, 6, v13')
    a('v_add_u32 v13, %d, v13' % VB)
    a('v_lshrrev_b32 v14, 1, v6')
    a('v_and_b32 v15, 1, v4')
    a('v_lshlrev_b32 v15, 1, v15')
    a('v_xor_b32 v14, v14, v15')
    a('v_lshl_add_u32 v13, v14, 4, v13')
    a('v_and_b32 v14, 1, v6')
    a('v_lshl_add_u32 v13, v14, 3, v13')
    a('v_xor_b32 v14, 32, v13')
    a('s_waitcnt lgkmcnt(0)')
    a('s_mul_i32 s56, s38, %d' % QKV_BR)
    a('s_add_u32 s52, s20, s56')
    a('s_addc_u32 s53, s21, 0')
    srd(a, 24, 's52', 's53', str(QKV_BR))
    a('s_mul_i32 s56, s38, %d' % O_BR)
    a('s_add_u32 s56, s56, %d' % O_OFF)
    a('s_add_u32 s52, s20, s56')
    a('s_addc_u32 s53, s21, 0')
    srd(a, 28, 's52', 's53', str(O_BR))
    SA, SB = 16, 84
    FR = 152
    QA, QB_, MLO, MHI = 224, 228, 232, 236
    OA = 224
    LA = 240
    ONES = 248
    def sa(t): return SA + 4 * t
    def sb(t): return SB + 4 * (t - 1)
    st()
    a('buffer_load_dwordx4 v[%d:%d], v10, s[24:27], 0 offen' % (QA, QA + 3)); vm.issue()
    a('buffer_load_dwordx4 v[%d:%d], v10, s[24:27], s50 offen' % (QB_, QB_ + 3)); qseq = vm.issue()
    a('s_lshl_b32 s47, s40, 12')
    for i in range(4):
        a('s_add_u32 s54, s47, %d' % (KB + i * 1024))
        a('s_mov_b32 m0, s54')
        a('buffer_load_dwordx4 v7, s[24:27], 0 offen lds'); vm.issue()
        a('s_add_u32 s54, s47, %d' % (VB + i * 1024))
        a('s_mov_b32 m0, s54')
        a('buffer_load_dwordx4 v8, s[24:27], 0 offen lds'); vm.issue()
        if i < 3:
            a('v_add_u32 v7, %d, v7' % (16 * QKV_PITCH))
            a('v_add_u32 v8, %d, v8' % (16 * QKV_PITCH))
    a('v_lshlrev_b32 v5, 2, v4')
    a('v_mov_b32 v6, 0xff800000')
    for j in range(4):
        a('v_add_u32 v15, %d, v5' % j)
        a('v_cmp_gt_u32 vcc, v15, v3')
        a('v_cndmask_b32 v%d, v6, 0, vcc' % (MLO + j))
        a('v_cndmask_b32 v%d, 0, v6, vcc' % (MHI + j))
    for j in range(4):
        a('v_mov_b32 v%d, 0x3f803f80' % (ONES + j))
    a('s_mov_b32 s55, 0x%08x' % cbits)
    vm.wait(qseq)
    a('v_cmp_gt_u32 vcc, 3, v4')
    for q in (QA, QB_):
        a('v_cndmask_b32 v%d, 0, v%d, vcc' % (q + 2, q + 2))
        a('v_cndmask_b32 v%d, 0, v%d, vcc' % (q + 3, q + 3))
    st()
    vm.wait(vm.issued)
    a('s_barrier')
    st()
    kseq = {}
    def kread(t):
        b = FR + 4 * t
        a('ds_read_b128 v[%d:%d], v12 offset:%d' % (b, b + 3, KB + t * 1024)); kseq[t] = lg.issue()
    for t in range(12): kread(t)
    for t in range(18):
        lg.wait(kseq[t])
        b = FR + 4 * t
        if t <= 16:
            c = 'v[%d:%d]' % (MLO, MLO + 3) if t == 0 else ('v[%d:%d]' % (MHI, MHI + 3) if t == 16 else '0')
            a('v_mfma_f32_16x16x32_bf16 v[%d:%d], v[%d:%d], v[%d:%d], %s' % (sa(t), sa(t) + 3, b, b + 3, QA, QA + 3, c))
        if t >= 1:
            c = 'v[%d:%d]' % (MLO, MLO + 3) if t == 1 else ('v[%d:%d]' % (MHI, MHI + 3) if t == 17 else '0')
            a('v_mfma_f32_16x16x32_bf16 v[%d:%d], v[%d:%d], v[%d:%d], %s' % (sb(t), sb(t) + 3, b, b + 3, QB_, QB_ + 3, c))
        if t + 12 < 18: kread(t + 12)
    vseq = {}
    def vread(u, dt):
        b = FR + (u * 2 + dt) * 4
        ad = 'v13' if dt == 0 else 'v14'
        a('ds_read_b64_tr_b16 v[%d:%d], %s offset:%d' % (b, b + 1, ad, (2 * u) * 1024)); lg.issue()
        a('ds_read_b64_tr_b16 v[%d:%d], %s offset:%d' % (b + 2, b + 3, ad, (2 * u + 1) * 1024)); vseq[(u, dt)] = lg.issue()
    a('s_cmp_lg_u32 s42, 0')
    a('s_cbranch_scc1 L_nofix_%s' % kname)
    a.nop(10)
    a('s_lshl_b32 s54, s40, 1')
    for t in range(16):
        a('s_cmp_ge_u32 s54, %d' % (16 - t))
        a('s_cbranch_scc1 L_nofix_%s' % kname)
        for j in range(4):
            a('v_mov_b32 v%d, v6' % (sa(t) + j))
            if t >= 1: a('v_mov_b32 v%d, v6' % (sb(t) + j))
    a.label('L_nofix_%s' % kname)
    a.nop(10)
    for u in range(3):
        vread(u, 0); vread(u, 1)
    st()
    MA, MB_, TA, TB = 5, 6, 7, 8
    def tiles(q): return [sa(t) for t in range(17)] if q == 0 else [sb(t) for t in range(1, 18)]
    for q, m in ((0, MA), (1, MB_)):
        regs = [r + j for r in tiles(q) for j in range(4)]
        a('v_max3_f32 v%d, v%d, v%d, v%d' % (m, regs[0], regs[1], regs[2]))
        i = 3
        while i + 1 < len(regs):
            a('v_max3_f32 v%d, v%d, v%d, v%d' % (m, m, regs[i], regs[i + 1])); i += 2
        if i < len(regs):
            a('v_max_f32 v%d, v%d, v%d' % (m, m, regs[i]))
    for swp in ('v_permlane32_swap_b32', 'v_permlane16_swap_b32'):
        a('v_mov_b32 v%d, v%d' % (TA, MA))
        a('v_mov_b32 v%d, v%d' % (TB, MB_))
        a('%s v%d, v%d' % (swp, TA, MA))
        a('%s v%d, v%d' % (swp, TB, MB_))
        a('v_max_f32 v%d, v%d, v%d' % (MA, MA, TA))
        a('v_max_f32 v%d, v%d, v%d' % (MB_, MB_, TB))
    a('v_mul_f32 v%d, s55, v%d' % (MA, MA))
    a('v_mul_f32 v%d, s55, v%d' % (MB_, MB_))
    st()
    def expo(r, m):
        for j in range(4):
            a('v_fma_f32 v%d, v%d, s55, -v%d' % (r + j, r + j, m))
        for j in range(4):
            a('v_exp_f32 v%d, v%d' % (r + j, r + j))
    for u in range(9):
        P = {}
        for q, m in ((0, MA), (1, MB_)):
            f = sa if q == 0 else sb
            t0, t1 = 2 * u, 2 * u + 1
            has0 = (t0 <= 16) if q == 0 else (t0 >= 1)
            has1 = (t1 <= 16) if q == 0 else True
            if has0 and has1:
                r0, r1 = f(t0), f(t1)
                expo(r0, m); expo(r1, m)
                a('v_cvt_pk_bf16_f32 v%d, v%d, v%d' % (r0, r0, r0 + 1))
                a('v_cvt_pk_bf16_f32 v%d, v%d, v%d' % (r0 + 1, r0 + 2, r0 + 3))
                a('v_cvt_pk_bf16_f32 v%d, v%d, v%d' % (r0 + 2, r1, r1 + 1))
                a('v_cvt_pk_bf16_f32 v%d, v%d, v%d' % (r0 + 3, r1 + 2, r1 + 3))
                P[q] = r0
            elif has0:
                r0 = f(t0)
                expo(r0, m)
                a('v_cvt_pk_bf16_f32 v%d, v%d, v%d' % (r0, r0, r0 + 1))
                a('v_cvt_pk_bf16_f32 v%d, v%d, v%d' % (r0 + 1, r0 + 2, r0 + 3))
                a('v_mov_b32 v%d, 0' % (r0 + 2))
                a('v_mov_b32 v%d, 0' % (r0 + 3))
                P[q] = r0
            else:
                r1 = f(t1)
                expo(r1, m)
                a('v_cvt_pk_bf16_f32 v%d, v%d, v%d' % (r1 + 3, r1 + 2, r1 + 3))
                a('v_cvt_pk_bf16_f32 v%d, v%d, v%d' % (r1 + 2, r1, r1 + 1))
                a('v_mov_b32 v%d, 0' % r1)
                a('v_mov_b32 v%d, 0' % (r1 + 1))
                P[q] = r1
        lg.wait(vseq[(u, 1)])
        for q in range(2):
            p = P[q]
            for dt in range(2):
                b = FR + (u * 2 + dt) * 4
                o = OA + (q * 2 + dt) * 4
                c = '0' if u == 0 else 'v[%d:%d]' % (o, o + 3)
                a('v_mfma_f32_16x16x32_bf16 v[%d:%d], v[%d:%d], v[%d:%d], %s' % (o, o + 3, b, b + 3, p, p + 3, c))
            l = LA + q * 4
            c = '0' if u == 0 else 'v[%d:%d]' % (l, l + 3)
            a('v_mfma_f32_16x16x32_bf16 v[%d:%d], v[%d:%d], v[%d:%d], %s' % (l, l + 3, ONES, ONES + 3, p, p + 3, c))
        if u + 3 < 9:
            vread(u + 3, 0); vread(u + 3, 1)
    st()
    a('v_cmp_gt_u32 vcc, 3, v4')
    a('v_mov_b32 v5, 0x7f000000')
    a('v_cndmask_b32 v15, v5, v11, vcc')
    for q in range(2):
        l = LA + q * 4
        a('v_rcp_f32 v%d, v%d' % (l, l))
    for q in range(2):
        l = LA + q * 4
        for dt in range(2):
            o = OA + (q * 2 + dt) * 4
            for j in range(4):
                a('v_mul_f32 v%d, v%d, v%d' % (o + j, o + j, l))
            a('v_cvt_pk_bf16_f32 v%d, v%d, v%d' % (o, o, o + 1))
            a('v_cvt_pk_bf16_f32 v%d, v%d, v%d' % (o + 1, o + 2, o + 3))
            a('buffer_store_dwordx2 v[%d:%d], %s, s[28:31], %s offen offset:%d' % (o, o + 1, 'v11' if dt == 0 else 'v15', 's51' if q else '0', dt * 32))
    st.flush(1)
    a.label('L_end_%s' % kname)
    a('s_endpgm')
    return dict(name=kname, grid=NWG, block=512, lds=LDS)


HEADER = open('cdna_kernels/%s.s.ref' % NAME).read().split('; Override launch')[0]


def build():
    ks = []
    bodies = []
    for fn in (lambda a: gemm(a, 'qkv_kernel', 1), lambda a: attn(a, 'attn_kernel'), lambda a: gemm(a, 'proj_kernel', 3)):
        a = Asm()
        info = fn(a)
        info['vgpr'] = a.maxv + 1
        info['sgpr'] = a.maxs + 1
        info['n'] = a.n_inst
        ks.append(info)
        bodies.append(a.out())
    out = HEADER
    for k in ks:
        out += '; @launch kernel=%s grid=(%d,1,1) block=(%d,1,1) lds=%d\n' % (k['name'], k['grid'], k['block'], k['lds'])
    out += '.amdgcn_target "amdgcn-amd-amdhsa--gfx950"\n.text\n'
    out += ''.join(bodies)
    out += '.section .rodata,"a"\n'
    for k in ks:
        v = k['vgpr']
        out += '''.p2align 6
.amdhsa_kernel %s
  .amdhsa_next_free_vgpr %d
  .amdhsa_next_free_sgpr %d
  .amdhsa_accum_offset %d
  .amdhsa_group_segment_fixed_size 0
  .amdhsa_kernarg_size 72
  .amdhsa_user_sgpr_count 2
  .amdhsa_user_sgpr_kernarg_segment_ptr 1
  .amdhsa_system_sgpr_workgroup_id_x 1
.end_amdhsa_kernel
''' % (k['name'], v, max(k['sgpr'], 16), (v + 3) // 4 * 4)
    for k in ks:
        print(k, file=sys.stderr)
    return out


if __name__ == '__main__':
    if len(sys.argv) > 2 and sys.argv[2] == 'stamp':
        STAMP = True
    dst = sys.argv[1] if len(sys.argv) > 1 else 'cdna_kernels/%s.s' % NAME
    open(dst, 'w').write(build())
```

```python
import sys, math, struct
from asmdsl import Asm
import gen
from gen import Ctr, srd, prologue_ptrs, Stamps, HEADER, NAME

S, D, H, DH = 2048, 448, 16, 28
WQKV_PITCH = 3 * D * 2
X_BYTES = S * D * 2
OUT_BYTES = S * 2 * D * 2
HB = S * 64
O_OFF = 2 * H * 3 * HB
O_BR = S * D * 2
CS = (DH ** -0.5) * math.log2(math.e)
CBITS = struct.unpack('<I', struct.pack('<f', CS))[0]


def header(a, kname, nwg):
    a.reset_hazards()
    a.text('.p2align 8')
    a.text('.globl %s' % kname)
    a.text('.type %s,@function' % kname)
    a.label(kname)
    a('s_cmp_ge_u32 s2, %d' % nwg)
    a('s_cbranch_scc1 L_end_%s' % kname)


def qkv(a, kname):
    NWG, NW, NTP, NKS, NF = 256, 8, 3, 14, 6
    WP = WQKV_PITCH
    EOFF = NKS * NTP * 1024 + 8
    DUMMY = 2 * NKS * NTP * 1024 + 16
    XOFF = DUMMY + 1024
    NSLOT = 4
    LDS = XOFF + NW * NSLOT * 2048
    header(a, kname, NWG)
    vm = Ctr(a, 'vmcnt', 63)
    lg = Ctr(a, 'lgkmcnt', 15)
    st = Stamps(a, lg)
    st()
    prologue_ptrs(a)
    a('v_lshrrev_b32 v1, 6, v0')
    a('v_and_b32 v2, 63, v0')
    a('v_readfirstlane_b32 s40, v1')
    a('s_and_b32 s36, s2, 7')
    a('s_lshr_b32 s37, s2, 3')
    a('s_lshr_b32 s38, s36, 2')
    a('s_and_b32 s36, s36, 3')
    a('s_and_b32 s39, s37, 15')
    a('s_lshr_b32 s41, s37, 4')
    a('s_lshl_b32 s42, s36, 1')
    a('s_add_u32 s42, s42, s41')
    a('s_lshl_b32 s43, s42, 3')
    a('s_add_u32 s43, s43, s40')
    a('s_mul_i32 s47, s39, %d' % (DH * 2))
    a('v_and_b32 v3, 15, v2')
    a('v_lshrrev_b32 v4, 4, v2')
    a('v_lshrrev_b32 v5, 2, v2')
    a('s_lshl_b32 s44, s43, 5')
    a('v_add_u32 v5, s44, v5')
    a('v_mul_u32_u24 v6, %d, v5' % (D * 2))
    a('v_sub_u32 v7, 4, v4')
    a('v_and_b32 v7, 3, v7')
    a('v_and_b32 v8, 3, v2')
    a('v_xor_b32 v7, v7, v8')
    a('v_lshl_add_u32 v6, v7, 4, v6')
    a('v_add_u32 v11, %d, v6' % (16 * D * 2))
    a('v_lshrrev_b32 v12, 2, v3')
    a('v_sub_u32 v12, 4, v12')
    a('v_and_b32 v12, 3, v12')
    a('v_xor_b32 v12, v12, v4')
    a('v_lshlrev_b32 v12, 4, v12')
    a('v_lshl_add_u32 v12, v3, 6, v12')
    a('s_lshl_b32 s58, s40, 13')
    a('s_add_u32 s58, s58, %d' % XOFF)
    a('v_add_u32 v12, s58, v12')
    a('s_lshl_b32 s48, s43, 11')
    a('v_lshlrev_b32 v7, 9, v4')
    a('v_add_u32 v7, s48, v7')
    a('v_lshl_add_u32 v13, v3, 4, v7')
    a('v_lshlrev_b32 v8, 2, v4')
    a('v_xor_b32 v8, v8, v3')
    a('v_lshl_add_u32 v14, v8, 4, v7')
    a('s_cmp_ge_u32 s40, %d' % NTP)
    a('s_cselect_b32 s49, 1, 0')
    a('s_mul_i32 s50, s49, %d' % NTP)
    a('s_sub_u32 s50, s40, s50')
    a('v_lshrrev_b32 v8, 2, v2')
    a('v_and_b32 v9, 7, v8')
    a('v_lshrrev_b32 v8, 3, v8')
    a('v_lshl_add_u32 v9, v8, 4, v9')
    a('s_lshl_b32 s51, s49, 3')
    a('v_add_u32 v9, s51, v9')
    a('v_mul_u32_u24 v9, %d, v9' % WP)
    a('v_and_b32 v8, 3, v2')
    a('v_lshl_add_u32 v9, v8, 4, v9')
    a('s_mul_i32 s51, s50, %d' % (D * 2))
    a('s_add_u32 s51, s51, s47')
    a('v_add_u32 v9, s51, v9')
    a('s_mul_i32 s45, s49, %d' % EOFF)
    a('s_lshl_b32 s51, s50, 10')
    a('s_add_u32 s45, s45, s51')
    a('s_mov_b32 s46, %d' % (NTP * 1024))
    a('s_cmp_ge_u32 s40, %d' % (2 * NTP))
    a('s_cselect_b32 s45, %d, s45' % DUMMY)
    a('s_cselect_b32 s46, 0, s46')
    a('s_cselect_b32 s51, 0x7f000000, 0')
    a('v_or_b32 v9, s51, v9')
    a('v_and_b32 v10, 1, v4')
    a('v_mul_u32_u24 v10, %d, v10' % EOFF)
    a('v_lshrrev_b32 v8, 1, v4')
    a('v_lshl_add_u32 v10, v8, 9, v10')
    a('v_lshl_add_u32 v10, v3, 4, v10')
    a('s_waitcnt lgkmcnt(0)')
    a('s_cmp_eq_u32 s38, 0')
    a('s_cselect_b32 s52, s4, s10')
    a('s_cselect_b32 s53, s5, s11')
    a('s_cselect_b32 s54, s6, s12')
    a('s_cselect_b32 s55, s7, s13')
    srd(a, 24, 's52', 's53', str(X_BYTES))
    srd(a, 28, 's54', 's55', str(D * WP))
    a('s_lshl_b32 s56, s38, 4')
    a('s_add_u32 s56, s56, s39')
    a('s_mul_i32 s56, s56, %d' % (3 * HB))
    a('s_add_u32 s52, s20, s56')
    a('s_addc_u32 s53, s21, 0')
    srd(a, 32, 's52', 's53', str(3 * HB))
    XB = 16
    WB = XB + 16
    AC = WB + 2 * NF * 4
    def xr(ks, rt): return XB + ((ks & 1) * 2 + rt) * 4
    def wr(ks, f): return WB + ((ks & 1) * NF + f) * 4
    def ac(f, rt): return AC + (f * 2 + rt) * 4
    st()
    seq = {}
    a('s_mov_b32 s51, 0')
    def dma(ks):
        a('s_mov_b32 m0, s45')
        a('buffer_load_dwordx4 v9, s[28:31], s51 offen lds'); vm.issue()
        a('s_add_u32 s57, s58, %d' % ((ks % NSLOT) * 2048))
        a('s_mov_b32 m0, s57')
        a('s_add_u32 s45, s45, s46')
        a('s_mov_b32 s59, %d' % (ks * 64))
        a('buffer_load_dwordx4 v6, s[24:27], s59 offen lds'); vm.issue()
        a('s_add_u32 s57, s57, 1024')
        a('s_mov_b32 m0, s57')
        a('s_add_u32 s51, s51, %d' % (32 * WP))
        a('buffer_load_dwordx4 v11, s[24:27], s59 offen lds'); seq[ks] = vm.issue()
    for ks in range(NSLOT): dma(ks)
    rseq, xseq = {}, {}
    def wreads(ks, f):
        tp, t = f >> 1, f & 1
        b = wr(ks, f)
        off = (ks * NTP + tp) * 1024 + 8 * t
        a('ds_read_b64_tr_b16 v[%d:%d], v10 offset:%d' % (b, b + 1, off)); lg.issue()
        a('ds_read_b64_tr_b16 v[%d:%d], v10 offset:%d' % (b + 2, b + 3, off + 256)); rseq[(ks, f)] = lg.issue()
    def xreads(ks):
        for rt in range(2):
            b = xr(ks, rt)
            a('ds_read_b128 v[%d:%d], v12 offset:%d' % (b, b + 3, (ks % NSLOT) * 2048 + rt * 1024)); xseq[ks] = lg.issue()
    st()
    vm.wait(seq[0]); a('s_barrier')
    st()
    xreads(0)
    for f in range(NF): wreads(0, f)
    lg.wait(xseq[0])
    dma(NSLOT)
    for ks in range(NKS):
        if ks + 1 < NKS:
            vm.wait(seq[ks + 1]); a('s_barrier')
            if ks in (3, 7, 11): st()
            xreads(ks + 1)
        for f in range(NF):
            lg.wait(rseq[(ks, f)])
            b = wr(ks, f)
            for rt in range(2):
                c = ac(f, rt); xb = xr(ks, rt)
                cs = '0' if ks == 0 else 'v[%d:%d]' % (c, c + 3)
                a('v_mfma_f32_16x16x32_bf16 v[%d:%d], v[%d:%d], v[%d:%d], %s' % (c, c + 3, b, b + 3, xb, xb + 3, cs))
            if ks + 1 < NKS:
                wreads(ks + 1, f)
            if f == 2 and ks + 1 + NSLOT < NKS:
                lg.wait(xseq[ks + 1])
                dma(ks + 1 + NSLOT)
    st()
    a('s_mov_b32 s55, 0x%08x' % CBITS)
    a('v_cmp_gt_u32 vcc, 3, v4')
    a('v_mov_b32 v5, 0x3f80')
    for tp in range(NTP):
        for rt in range(2):
            c0, c1 = ac(2 * tp, rt), ac(2 * tp + 1, rt)
            o = XB + ((tp * 2 + rt) % 4) * 4
            if tp == 0:
                for j in range(4):
                    a('v_mul_f32 v%d, s55, v%d' % (c0 + j, c0 + j))
                    a('v_mul_f32 v%d, s55, v%d' % (c1 + j, c1 + j))
            a('v_cvt_pk_bf16_f32 v%d, v%d, v%d' % (o, c0, c0 + 1))
            a('v_cvt_pk_bf16_f32 v%d, v%d, v%d' % (o + 1, c0 + 2, c0 + 3))
            a('v_cvt_pk_bf16_f32 v%d, v%d, v%d' % (o + 2, c1, c1 + 1))
            a('v_cvt_pk_bf16_f32 v%d, v%d, v%d' % (o + 3, c1 + 2, c1 + 3))
            if tp == 0:
                a('v_cndmask_b32 v%d, 0, v%d, vcc' % (o + 2, o + 2))
                a('v_cndmask_b32 v%d, 0, v%d, vcc' % (o + 3, o + 3))
            if tp == 2:
                a('v_cndmask_b32 v%d, v5, v%d, vcc' % (o + 2, o + 2))
                a('v_cndmask_b32 v%d, 0, v%d, vcc' % (o + 3, o + 3))
            a('s_mov_b32 s57, %d' % (tp * HB))
            a('buffer_store_dwordx4 v[%d:%d], %s, s[32:35], s57 offen offset:%d' % (o, o + 3, 'v14' if tp == 2 else 'v13', rt * 256))
    st.flush(0)
    a.label('L_end_%s' % kname)
    a('s_endpgm')
    return dict(name=kname, grid=NWG, block=NW * 64, lds=LDS)


def attn(a, kname):
    NWG = 256
    KB, VB = 0, 32768
    LDS = 65536
    header(a, kname, NWG)
    vm = Ctr(a, 'vmcnt', 63)
    lg = Ctr(a, 'lgkmcnt', 15)
    st = Stamps(a, lg)
    st()
    prologue_ptrs(a)
    a('v_lshrrev_b32 v1, 6, v0')
    a('v_and_b32 v2, 63, v0')
    a('v_readfirstlane_b32 s40, v1')
    a('s_and_b32 s36, s2, 7')
    a('s_lshr_b32 s37, s2, 3')
    a('s_lshr_b32 s38, s36, 2')
    a('s_and_b32 s36, s36, 3')
    a('s_and_b32 s39, s37, 15')
    a('s_lshr_b32 s41, s37, 4')
    a('s_lshl_b32 s42, s36, 1')
    a('s_add_u32 s42, s42, s41')
    a('v_and_b32 v3, 31, v2')
    a('v_lshrrev_b32 v4, 5, v2')
    a('v_lshlrev_b32 v5, 4, v2')
    a('s_lshl_b32 s43, s42, 14')
    a('s_lshl_b32 s44, s40, 12')
    a('s_add_u32 s45, s43, s44')
    a('s_sub_u32 s45, s45, 16384')
    a('v_add_u32 v7, s45, v5')
    a('s_lshl_b32 s46, s40, 11')
    a('s_add_u32 s47, s43, s46')
    a('v_add_u32 v10, s47, v5')
    a('v_add_u32 v12, s46, v5')
    a('v_lshrrev_b32 v6, 4, v2')
    a('v_and_b32 v6, 1, v6')
    a('v_lshlrev_b32 v6, 1, v6')
    a('v_bfe_u32 v8, v2, 1, 1')
    a('v_add_u32 v6, v6, v8')
    a('v_bfe_u32 v8, v2, 2, 2')
    a('v_lshl_add_u32 v8, v4, 2, v8')
    a('v_lshlrev_b32 v9, 2, v6')
    a('v_xor_b32 v13, v8, v9')
    a('v_xor_b32 v14, 8, v13')
    a('v_lshlrev_b32 v9, 9, v6')
    a('v_and_b32 v8, 1, v2')
    a('v_lshl_add_u32 v9, v8, 3, v9')
    a('v_add_u32 v9, s46, v9')
    a('v_add_u32 v9, %d, v9' % VB)
    a('v_lshl_add_u32 v13, v13, 4, v9')
    a('v_lshl_add_u32 v14, v14, 4, v9')
    a('s_mul_i32 s48, s39, 7')
    a('v_add_u32 v8, s48, v4')
    a('v_lshrrev_b32 v9, 1, v8')
    a('v_lshlrev_b32 v9, 8, v9')
    a('v_and_b32 v8, 1, v8')
    a('v_lshl_add_u32 v9, v8, 3, v9')
    a('v_and_b32 v8, 15, v3')
    a('v_lshl_add_u32 v9, v8, 4, v9')
    a('s_lshl_b32 s49, s42, 4')
    a('s_lshl_b32 s50, s40, 1')
    a('s_add_u32 s49, s49, s50')
    a('v_lshrrev_b32 v8, 4, v3')
    a('v_add_u32 v8, s49, v8')
    a('v_mul_u32_u24 v8, %d, v8' % (56 * 256))
    a('v_add_u32 v11, v8, v9')
    a('s_waitcnt lgkmcnt(0)')
    a('s_lshl_b32 s56, s38, 4')
    a('s_add_u32 s56, s56, s39')
    a('s_mul_i32 s56, s56, %d' % (3 * HB))
    a('s_add_u32 s52, s20, s56')
    a('s_addc_u32 s53, s21, 0')
    srd(a, 24, 's52', 's53', str(HB))
    a('s_add_u32 s52, s52, %d' % HB)
    a('s_addc_u32 s53, s53, 0')
    srd(a, 28, 's52', 's53', str(HB))
    a('s_add_u32 s52, s52, %d' % HB)
    a('s_addc_u32 s53, s53, 0')
    srd(a, 32, 's52', 's53', str(HB))
    a('s_mul_i32 s56, s38, %d' % O_BR)
    a('s_add_u32 s56, s56, %d' % O_OFF)
    a('s_add_u32 s52, s20, s56')
    a('s_addc_u32 s53, s21, 0')
    srd(a, 60, 's52', 's53', str(O_BR))
    SB = 16
    FR = 160
    QR = 232
    OA = 240
    def sr(t): return SB + 16 * t
    st()
    for i in range(4):
        a('s_add_u32 s54, s44, %d' % (KB + i * 1024))
        a('s_mov_b32 m0, s54')
        a('v_add_u32 v8, %d, v7' % (i * 1024))
        a('buffer_load_dwordx4 v8, s[28:31], 0 offen lds'); vm.issue()
    a('buffer_load_dwordx4 v[%d:%d], v10, s[24:27], 0 offen' % (QR, QR + 3)); vm.issue()
    a('buffer_load_dwordx4 v[%d:%d], v10, s[24:27], 0 offen offset:1024' % (QR + 4, QR + 7)); kqseq = vm.issue()
    for i in range(4):
        a('s_add_u32 s54, s44, %d' % (VB + i * 1024))
        a('s_mov_b32 m0, s54')
        a('v_add_u32 v8, %d, v7' % (i * 1024))
        a('buffer_load_dwordx4 v8, s[32:35], 0 offen lds'); vm.issue()
    a('v_lshlrev_b32 v5, 2, v4')
    a('v_sub_u32 v5, v3, v5')
    a('v_mov_b32 v6, 0xff800000')
    for r in range(16):
        bb = 8 * (r >> 2) + (r & 3)
        a('v_cmp_le_i32 vcc, %d, v5' % bb)
        a('v_cndmask_b32 v%d, 0, v6, vcc' % (sr(0) + r))
        a('v_cndmask_b32 v%d, v6, 0, vcc' % (sr(8) + r))
    st()
    vm.wait(kqseq)
    a('s_barrier')
    st()
    kseq = {}
    def kread(t, j):
        b = FR + (2 * t + j) * 4
        a('ds_read_b128 v[%d:%d], v12 offset:%d' % (b, b + 3, KB + t * 2048 + j * 1024)); kseq[(t, j)] = lg.issue()
    order = [(t, j) for t in range(9) for j in range(2)]
    for (t, j) in order[:12]: kread(t, j)
    for idx, (t, j) in enumerate(order):
        lg.wait(kseq[(t, j)])
        b = FR + (2 * t + j) * 4
        s = sr(t)
        c = '0' if (j == 0 and t not in (0, 8)) else 'v[%d:%d]' % (s, s + 15)
        a('v_mfma_f32_32x32x16_bf16 v[%d:%d], v[%d:%d], v[%d:%d], %s' % (s, s + 15, b, b + 3, QR + 4 * j, QR + 4 * j + 3, c))
        if idx + 12 < 18: kread(*order[idx + 12])
    vm.wait(vm.issued)
    a('s_barrier')
    vseq = {}
    def vread(t, j):
        b = FR + (2 * t + j) * 4
        off = t * 2048 + j * 256
        a('ds_read_b64_tr_b16 v[%d:%d], v13 offset:%d' % (b, b + 1, off)); lg.issue()
        a('ds_read_b64_tr_b16 v[%d:%d], v14 offset:%d' % (b + 2, b + 3, off)); vseq[(t, j)] = lg.issue()
    a('s_cmp_lg_u32 s42, 0')
    a('s_cbranch_scc1 L_nofix_%s' % kname)
    a.nop(14)
    for t in range(8):
        a('s_cmp_ge_u32 s40, %d' % (8 - t))
        a('s_cbranch_scc1 L_nofix_%s' % kname)
        for r in range(16):
            a('v_mov_b32 v%d, v6' % (sr(t) + r))
    a.label('L_nofix_%s' % kname)
    a.nop(14)
    for (t, j) in order[:6]: vread(t, j)
    st()
    M0_, M1_, T_ = 5, 6, 7
    regs = [sr(t) + r for t in range(9) for r in range(16)]
    half = len(regs) // 2
    for m, rr in ((M0_, regs[:half]), (M1_, regs[half:])):
        a('v_max3_f32 v%d, v%d, v%d, v%d' % (m, rr[0], rr[1], rr[2]))
    i = 3
    while i + 1 < half:
        for m, rr in ((M0_, regs[:half]), (M1_, regs[half:])):
            a('v_max3_f32 v%d, v%d, v%d, v%d' % (m, m, rr[i], rr[i + 1]))
        i += 2
    a('v_max3_f32 v%d, v%d, v%d, v%d' % (M0_, M0_, regs[half - 1], regs[-1]))
    a('v_max_f32 v%d, v%d, v%d' % (M0_, M0_, M1_))
    a('v_mov_b32 v%d, v%d' % (T_, M0_))
    a('v_permlane32_swap_b32 v%d, v%d' % (T_, M0_))
    a('v_max_f32 v%d, v%d, v%d' % (M0_, M0_, T_))
    st()
    for idx, (t, j) in enumerate(order):
        r0 = sr(t) + 8 * j
        for k in range(8):
            a('v_sub_f32 v%d, v%d, v%d' % (r0 + k, r0 + k, M0_))
        for k in range(8):
            a('v_exp_f32 v%d, v%d' % (r0 + k, r0 + k))
        for k in range(4):
            a('v_cvt_pk_bf16_f32 v%d, v%d, v%d' % (r0 + k, r0 + 2 * k, r0 + 2 * k + 1))
        lg.wait(vseq[(t, j)])
        b = FR + (2 * t + j) * 4
        c = '0' if idx == 0 else 'v[%d:%d]' % (OA, OA + 15)
        a('v_mfma_f32_32x32x16_bf16 v[%d:%d], v[%d:%d], v[%d:%d], %s' % (OA, OA + 15, b, b + 3, r0, r0 + 3, c))
        if idx + 6 < 18: vread(*order[idx + 6])
    st()
    a('v_cmp_eq_u32 vcc, 0, v4')
    a('v_mov_b32 v5, 0x7f000000')
    a('v_cndmask_b32 v15, v5, v11, vcc')
    a('v_mov_b32 v5, v%d' % (OA + 12))
    a('v_mov_b32 v6, v%d' % (OA + 12))
    a('v_permlane32_swap_b32 v5, v6')
    a('v_rcp_f32 v6, v6')
    for i in range(4):
        o = OA + 4 * i
        for k in range(4):
            a('v_mul_f32 v%d, v%d, v6' % (o + k, o + k))
        a('v_cvt_pk_bf16_f32 v%d, v%d, v%d' % (o, o, o + 1))
        a('v_cvt_pk_bf16_f32 v%d, v%d, v%d' % (o + 1, o + 2, o + 3))
        a('buffer_store_dwordx2 v[%d:%d], %s, s[60:63], 0 offen offset:%d' % (o, o + 1, 'v15' if i == 3 else 'v11', i * 256))
    st.flush(1)
    a.label('L_end_%s' % kname)
    a('s_endpgm')
    return dict(name=kname, grid=NWG, block=512, lds=LDS)


def proj(a, kname):
    NW, NTP, NB, MBX, ROWS = 4, 2, 7, 4, 128
    WP, OP = D * 2, 2 * D * 2
    NWG = 8 * NB * MBX
    NKS = 14
    EOFF = NKS * NTP * 1024 + 8
    LDS = 2 * NKS * NTP * 1024 + 16
    NF = 2 * NTP
    header(a, kname, NWG)
    vm = Ctr(a, 'vmcnt', 63)
    lg = Ctr(a, 'lgkmcnt', 15)
    st = Stamps(a, lg)
    st()
    prologue_ptrs(a)
    a('v_lshrrev_b32 v1, 6, v0')
    a('v_and_b32 v2, 63, v0')
    a('v_readfirstlane_b32 s40, v1')
    a('s_and_b32 s36, s2, 7')
    a('s_lshr_b32 s37, s2, 3')
    a('s_lshr_b32 s38, s36, 2')
    a('s_and_b32 s36, s36, 3')
    a('s_mul_i32 s39, s37, 37')
    a('s_lshr_b32 s39, s39, 8')
    a('s_mul_i32 s41, s39, %d' % NB)
    a('s_sub_u32 s41, s37, s41')
    a('s_mul_i32 s42, s36, %d' % MBX)
    a('s_add_u32 s42, s42, s39')
    a('s_lshl_b32 s43, s42, 3')
    a('s_lshl_b32 s44, s40, 1')
    a('s_add_u32 s43, s43, s44')
    a('s_mul_i32 s47, s41, %d' % (NTP * 64))
    a('v_and_b32 v3, 15, v2')
    a('v_lshrrev_b32 v4, 4, v2')
    a('s_mul_i32 s44, s43, %d' % (56 * 256))
    a('v_lshlrev_b32 v6, 4, v2')
    a('v_add_u32 v6, s44, v6')
    a('v_add_u32 v11, %d, v6' % (56 * 256))
    a('s_lshl_b32 s44, s43, 4')
    a('v_add_u32 v5, s44, v3')
    a('v_mul_u32_u24 v7, %d, v5' % OP)
    a('v_lshl_add_u32 v7, v4, 4, v7')
    a('v_add_u32 v7, s47, v7')
    a('s_mov_b32 s48, %d' % (16 * OP))
    a('s_cmp_ge_u32 s40, %d' % NTP)
    a('s_cselect_b32 s49, 1, 0')
    a('s_mul_i32 s50, s49, %d' % NTP)
    a('s_sub_u32 s50, s40, s50')
    a('v_lshrrev_b32 v8, 2, v2')
    a('v_and_b32 v9, 7, v8')
    a('v_lshrrev_b32 v8, 3, v8')
    a('v_lshl_add_u32 v9, v8, 4, v9')
    a('s_lshl_b32 s51, s49, 3')
    a('v_add_u32 v9, s51, v9')
    a('v_mul_u32_u24 v9, %d, v9' % WP)
    a('v_and_b32 v8, 3, v2')
    a('v_lshl_add_u32 v9, v8, 4, v9')
    a('s_lshl_b32 s51, s50, 6')
    a('s_add_u32 s51, s51, s47')
    a('v_add_u32 v9, s51, v9')
    a('s_mul_i32 s45, s49, %d' % EOFF)
    a('s_lshl_b32 s51, s50, 10')
    a('s_add_u32 s45, s45, s51')
    a('v_and_b32 v10, 1, v4')
    a('v_mul_u32_u24 v10, %d, v10' % EOFF)
    a('v_lshrrev_b32 v8, 1, v4')
    a('v_lshl_add_u32 v10, v8, 9, v10')
    a('v_lshl_add_u32 v10, v3, 4, v10')
    a('s_waitcnt lgkmcnt(0)')
    a('s_cmp_eq_u32 s38, 0')
    a('s_cselect_b32 s54, s8, s14')
    a('s_cselect_b32 s55, s9, s15')
    srd(a, 28, 's54', 's55', str(D * D * 2))
    a('s_mul_i32 s56, s38, %d' % O_BR)
    a('s_add_u32 s56, s56, %d' % O_OFF)
    a('s_add_u32 s52, s20, s56')
    a('s_addc_u32 s53, s21, 0')
    srd(a, 24, 's52', 's53', str(O_BR))
    a('s_mul_i32 s56, s38, %d' % (D * 2))
    a('s_add_u32 s52, s16, s56')
    a('s_addc_u32 s53, s17, 0')
    a('s_sub_u32 s57, %d, s56' % OUT_BYTES)
    srd(a, 32, 's52', 's53', 's57')
    XB = 16
    WB = XB + NKS * 8
    AC = WB + 2 * NF * 4
    def xr(ks, rt): b = XB + (ks * 2 + rt) * 4; return 'v[%d:%d]' % (b, b + 3)
    def wr(ks, f): return WB + ((ks & 1) * NF + f) * 4
    def ac(f, rt): return AC + (f * 2 + rt) * 4
    st()
    seq = {}
    a('s_mov_b32 s51, 0')
    a('s_mov_b32 s59, 0')
    for ks in range(NKS):
        a('s_mov_b32 m0, s45')
        a('buffer_load_dwordx4 v9, s[28:31], s51 offen lds'); vm.issue()
        a('buffer_load_dwordx4 %s, v6, s[24:27], s59 offen' % xr(ks, 0)); vm.issue()
        a('buffer_load_dwordx4 %s, v11, s[24:27], s59 offen' % xr(ks, 1)); seq[ks] = vm.issue()
        if ks + 1 < NKS:
            a('s_add_u32 s45, s45, %d' % (NTP * 1024))
            a('s_add_u32 s51, s51, %d' % (32 * WP))
            a('s_add_u32 s59, s59, 1024')
    rseq = {}
    def reads(ks, f):
        tp, t = f >> 1, f & 1
        b = wr(ks, f)
        off = (ks * NTP + tp) * 1024 + 8 * t
        a('ds_read_b64_tr_b16 v[%d:%d], v10 offset:%d' % (b, b + 1, off)); lg.issue()
        a('ds_read_b64_tr_b16 v[%d:%d], v10 offset:%d' % (b + 2, b + 3, off + 256)); rseq[(ks, f)] = lg.issue()
    st()
    vm.wait(seq[1]); a('s_barrier')
    st()
    for f in range(NF): reads(0, f)
    for ks in range(NKS):
        if ks + 1 < NKS and (ks + 1) % 2 == 0:
            vm.wait(seq[ks + 2]); a('s_barrier')
            if ks in (3, 7, 11): st()
        for f in range(NF):
            lg.wait(rseq[(ks, f)])
            b = wr(ks, f)
            for rt in range(2):
                c = ac(f, rt)
                cs = '0' if ks == 0 else 'v[%d:%d]' % (c, c + 3)
                a('v_mfma_f32_16x16x32_bf16 v[%d:%d], v[%d:%d], %s, %s' % (c, c + 3, b, b + 3, xr(ks, rt), cs))
            if ks + 1 < NKS:
                reads(ks + 1, f)
    st()
    for tp in range(NTP):
        for rt in range(2):
            c0, c1 = ac(2 * tp, rt), ac(2 * tp + 1, rt)
            o = XB + (tp * 2 + rt) * 4
            a('v_cvt_pk_bf16_f32 v%d, v%d, v%d' % (o, c0, c0 + 1))
            a('v_cvt_pk_bf16_f32 v%d, v%d, v%d' % (o + 1, c0 + 2, c0 + 3))
            a('v_cvt_pk_bf16_f32 v%d, v%d, v%d' % (o + 2, c1, c1 + 1))
            a('v_cvt_pk_bf16_f32 v%d, v%d, v%d' % (o + 3, c1 + 2, c1 + 3))
            a('buffer_store_dwordx4 v[%d:%d], v7, s[32:35], %s offen offset:%d' % (o, o + 3, 's48' if rt else '0', tp * 64))
    st.flush(2)
    a.label('L_end_%s' % kname)
    a('s_endpgm')
    return dict(name=kname, grid=NWG, block=NW * 64, lds=LDS)


def build(fns):
    ks, bodies = [], []
    for fn in fns:
        a = Asm()
        info = fn(a)
        info['vgpr'] = a.maxv + 1
        info['sgpr'] = a.maxs + 1
        info['n'] = a.n_inst
        ks.append(info)
        bodies.append(a.out())
    out = HEADER
    for k in ks:
        out += '; @launch kernel=%s grid=(%d,1,1) block=(%d,1,1) lds=%d\n' % (k['name'], k['grid'], k['block'], k['lds'])
    out += '.amdgcn_target "amdgcn-amd-amdhsa--gfx950"\n.text\n'
    out += ''.join(bodies)
    out += '.section .rodata,"a"\n'
    for k in ks:
        v = k['vgpr']
        out += '''.p2align 6
.amdhsa_kernel %s
  .amdhsa_next_free_vgpr %d
  .amdhsa_next_free_sgpr %d
  .amdhsa_accum_offset %d
  .amdhsa_group_segment_fixed_size 0
  .amdhsa_kernarg_size 72
  .amdhsa_user_sgpr_count 2
  .amdhsa_user_sgpr_kernarg_segment_ptr 1
  .amdhsa_system_sgpr_workgroup_id_x 1
.end_amdhsa_kernel
''' % (k['name'], v, max(k['sgpr'], 16), (v + 3) // 4 * 4)
    for k in ks:
        print(k, file=sys.stderr)
    return out


if __name__ == '__main__':
    if len(sys.argv) > 2 and sys.argv[2] == 'stamp':
        gen.STAMP = True
    dst = sys.argv[1] if len(sys.argv) > 1 else 'cdna_kernels/%s.s' % NAME
    open(dst, 'w').write(build([lambda a: qkv(a, 'qkv_kernel'), lambda a: attn(a, 'attn_kernel'), lambda a: proj(a, 'proj_kernel')]))
```

```python
import sys, math, struct
from asmdsl import Asm
import gen, gen2
from gen import Ctr, srd, prologue_ptrs, Stamps, HEADER, NAME
from gen2 import *


def qkv3(a, kname):
    NW, NB, MBX = 8, 7, 4
    NWG = 8 * NB * MBX
    NKS, NST, NSLOT = 14, 7, 3
    NF = 6
    WP = WQKV_PITCH
    WSLOT = 12288
    EOFF = NSLOT * WSLOT + 8
    XOFF = 2 * NSLOT * WSLOT + 128
    XSLOT = 16384
    LDS = XOFF + NSLOT * XSLOT
    header(a, kname, NWG)
    vm = Ctr(a, 'vmcnt', 63)
    lg = Ctr(a, 'lgkmcnt', 15)
    st = Stamps(a, lg)
    st()
    prologue_ptrs(a)
    a('v_lshrrev_b32 v1, 6, v0')
    a('v_and_b32 v2, 63, v0')
    a('v_readfirstlane_b32 s40, v1')
    a('s_and_b32 s36, s2, 7')
    a('s_lshr_b32 s37, s2, 3')
    a('s_lshr_b32 s38, s36, 2')
    a('s_and_b32 s36, s36, 3')
    a('s_mul_i32 s39, s37, 37')
    a('s_lshr_b32 s39, s39, 8')
    a('s_mul_i32 s41, s39, %d' % NB)
    a('s_sub_u32 s41, s37, s41')
    a('s_mul_i32 s42, s36, %d' % MBX)
    a('s_add_u32 s42, s42, s39')
    a('s_and_b32 s43, s40, 3')
    a('s_lshr_b32 s44, s40, 2')
    a('v_and_b32 v3, 15, v2')
    a('v_lshrrev_b32 v4, 4, v2')
    a('v_lshrrev_b32 v5, 3, v2')
    a('v_and_b32 v8, 7, v2')
    a('s_lshl_b32 s45, s42, 7')
    a('s_lshl_b32 s46, s40, 4')
    a('s_add_u32 s45, s45, s46')
    a('v_add_u32 v6, s45, v5')
    a('v_mul_u32_u24 v6, %d, v6' % (D * 2))
    a('v_lshrrev_b32 v7, 1, v5')
    a('v_xor_b32 v9, v7, v8')
    a('v_lshl_add_u32 v11, v9, 4, v6')
    a('v_xor_b32 v9, 4, v9')
    a('v_lshl_add_u32 v6, v9, 4, v6')
    a('v_add_u32 v6, %d, v6' % (8 * D * 2))
    a('s_lshl_b32 s58, s40, 11')
    a('s_add_u32 s58, s58, %d' % XOFF)
    a('v_lshrrev_b32 v12, 1, v3')
    a('v_xor_b32 v12, v12, v4')
    a('v_lshlrev_b32 v12, 4, v12')
    a('v_lshl_add_u32 v12, v3, 7, v12')
    a('s_lshl_b32 s46, s43, 12')
    a('s_add_u32 s46, s46, %d' % XOFF)
    a('v_add_u32 v12, s46, v12')
    a('v_xor_b32 v13, 64, v12')
    a('s_lshl_b32 s46, s40, 3')
    a('v_add_u32 v9, s46, v5')
    a('v_mul_u32_u24 v9, %d, v9' % WP)
    a('v_and_b32 v7, 1, v7')
    a('v_lshlrev_b32 v7, 2, v7')
    a('v_xor_b32 v7, v7, v8')
    a('v_lshl_add_u32 v9, v7, 4, v9')
    a('s_mul_i32 s47, s41, 384')
    a('v_add_u32 v9, s47, v9')
    a('s_and_b32 s48, s40, 1')
    a('s_mul_i32 s48, s48, %d' % EOFF)
    a('s_mul_i32 s49, s44, 6144')
    a('s_add_u32 s48, s48, s49')
    a('s_lshr_b32 s49, s43, 1')
    a('s_mul_i32 s49, s49, 3072')
    a('s_add_u32 s48, s48, s49')
    a('v_and_b32 v10, 1, v4')
    a('v_mul_u32_u24 v10, %d, v10' % EOFF)
    a('v_lshrrev_b32 v7, 1, v4')
    a('v_mul_u32_u24 v7, 3072, v7')
    a('v_add_u32 v10, v10, v7')
    a('v_lshrrev_b32 v7, 2, v3')
    a('v_lshl_add_u32 v10, v7, 7, v10')
    a('v_and_b32 v8, 3, v2')
    a('v_lshl_add_u32 v10, v8, 4, v10')
    a('v_lshrrev_b32 v7, 1, v7')
    a('s_mul_i32 s49, s44, 3')
    WA = [14, 15, 10]
    for i in range(3):
        a('s_add_u32 s50, s49, %d' % i)
        a('s_lshr_b32 s51, s50, 1')
        a('s_and_b32 s50, s50, 1')
        a('s_lshl_b32 s51, s51, 10')
        a('v_xor_b32 v8, s50, v7')
        a('v_lshlrev_b32 v8, 6, v8')
        a('v_add3_u32 v%d, v10, v8, s51' % WA[i])
    a('s_waitcnt lgkmcnt(0)')
    a('s_cmp_eq_u32 s38, 0')
    a('s_cselect_b32 s52, s4, s10')
    a('s_cselect_b32 s53, s5, s11')
    a('s_cselect_b32 s54, s6, s12')
    a('s_cselect_b32 s55, s7, s13')
    srd(a, 24, 's52', 's53', str(X_BYTES))
    srd(a, 28, 's54', 's55', str(D * WP))
    a('s_mul_i32 s56, s38, %d' % (H * 3 * HB))
    a('s_add_u32 s52, s20, s56')
    a('s_addc_u32 s53, s21, 0')
    srd(a, 32, 's52', 's53', str(H * 3 * HB))
    XB = 16
    WB = XB + 16
    AC = WB + 2 * NF * 4
    TMP = AC + 48
    def xr(ks, rt): return XB + ((ks & 1) * 2 + rt) * 4
    def wr(ks, f): return WB + ((ks & 1) * NF + f) * 4
    def ac(f, rt): return AC + (f * 2 + rt) * 4
    st()
    seq = {}
    def dma(sg):
        sl = sg % NSLOT
        for i in range(3):
            a('s_add_u32 s57, s48, %d' % (sl * WSLOT + i * 1024))
            a('s_mov_b32 m0, s57')
            a('s_mov_b32 s59, %d' % (sg * 64 * WP + i * 128))
            a('buffer_load_dwordx4 v9, s[28:31], s59 offen lds'); vm.issue()
        a('s_mov_b32 s59, %d' % (sg * 128))
        for i, vr_ in enumerate(('v11', 'v6')):
            a('s_add_u32 s57, s58, %d' % (sl * XSLOT + i * 1024))
            a('s_mov_b32 m0, s57')
            a('buffer_load_dwordx4 %s, s[24:27], s59 offen lds' % vr_); seq[sg] = vm.issue()
    for sg in range(NSLOT): dma(sg)
    rseq, xseq = {}, {}
    def wreads(ks, f):
        i, t = f >> 1, f & 1
        b = wr(ks, f)
        off = ((ks >> 1) % NSLOT) * WSLOT + (ks & 1) * 6144 + 8 * t
        a('ds_read_b64_tr_b16 v[%d:%d], v%d offset:%d' % (b, b + 1, WA[i], off)); lg.issue()
        a('ds_read_b64_tr_b16 v[%d:%d], v%d offset:%d' % (b + 2, b + 3, WA[i], off + 512)); rseq[(ks, f)] = lg.issue()
    def xreads(ks):
        for rt in range(2):
            b = xr(ks, rt)
            a('ds_read_b128 v[%d:%d], %s offset:%d' % (b, b + 3, 'v13' if ks & 1 else 'v12', ((ks >> 1) % NSLOT) * XSLOT + rt * 2048)); xseq[ks] = lg.issue()
    st()
    vm.wait(seq[0]); a('s_barrier')
    st()
    xreads(0)
    for f in range(NF): wreads(0, f)
    for ks in range(NKS):
        if ks + 1 < NKS:
            if (ks + 1) % 2 == 0:
                sg = (ks + 1) // 2
                lg.wait(lg.issued)
                vm.wait(seq[sg]); a('s_barrier')
                if sg in (2, 4, 6): st()
                if sg + 2 < NST: dma(sg + 2)
            xreads(ks + 1)
        for f in range(NF):
            lg.wait(rseq[(ks, f)])
            if f == 0: lg.wait(xseq[ks])
            b = wr(ks, f)
            for rt in range(2):
                c = ac(f, rt); xb = xr(ks, rt)
                cs = '0' if ks == 0 else 'v[%d:%d]' % (c, c + 3)
                a('v_mfma_f32_16x16x32_bf16 v[%d:%d], v[%d:%d], v[%d:%d], %s' % (c, c + 3, b, b + 3, xb, xb + 3, cs))
            if ks + 1 < NKS:
                wreads(ks + 1, f)
    st()
    a('s_lshl_b32 s45, s42, 2')
    a('s_add_u32 s45, s45, s43')
    a('s_lshl_b32 s45, s45, 11')
    a('s_mul_i32 s46, s41, 192')
    a('s_mul_i32 s47, s44, 96')
    a('s_add_u32 s46, s46, s47')
    a('s_mov_b32 s55, 0x%08x' % CBITS)
    a('s_mov_b32 s50, 9363')
    a('v_lshlrev_b32 v5, 3, v4')
    a('v_add_u32 v5, s46, v5')
    for i in range(3):
        for grp in range(2):
            a('v_add_u32 v6, %d, v5' % (i * 32 + grp * 4))
            a('v_mul_u32_u24 v7, s50, v6')
            a('v_lshrrev_b32 v7, 18, v7')
            a('v_mul_u32_u24 v8, 28, v7')
            a('v_sub_u32 v8, v6, v8')
            a('v_lshrrev_b32 v9, 4, v7')
            a('v_and_b32 v10, 15, v7')
            a('v_mul_u32_u24 v10, 3, v10')
            a('v_add_u32 v10, v10, v9')
            a('v_lshlrev_b32 v10, 17, v10')
            a('v_lshrrev_b32 v11, 3, v8')
            a('v_lshl_add_u32 v10, v11, 9, v10')
            a('v_and_b32 v12, 4, v8')
            a('v_lshl_add_u32 v10, v12, 1, v10')
            a('v_cmp_eq_u32 vcc, 2, v9')
            a('v_lshlrev_b32 v11, 2, v11')
            a('v_cndmask_b32 v11, 0, v11, vcc')
            a('v_xor_b32 v11, v11, v3')
            a('v_lshl_add_u32 v%d, v11, 4, v10' % (TMP + 2 * i + grp))
            a('v_cmp_eq_u32 vcc, 0, v9')
            a('v_mov_b32 v12, 1.0')
            a('v_mov_b32 v13, s55')
            a('v_cndmask_b32 v%d, v12, v13, vcc' % (TMP + 6 + 2 * i + grp))
    for i in range(3):
        for rt in range(2):
            for grp in range(2):
                c = ac(2 * i + grp, rt)
                o = XB + ((i * 4 + rt * 2 + grp) % 8) * 2
                sc = TMP + 6 + 2 * i + grp
                for j in range(4):
                    a('v_mul_f32 v%d, v%d, v%d' % (c + j, c + j, sc))
                a('v_cvt_pk_bf16_f32 v%d, v%d, v%d' % (o, c, c + 1))
                a('v_cvt_pk_bf16_f32 v%d, v%d, v%d' % (o + 1, c + 2, c + 3))
                a('buffer_store_dwordx2 v[%d:%d], v%d, s[32:35], s45 offen offset:%d' % (o, o + 1, TMP + 2 * i + grp, rt * 256))
    a('v_and_b32 v5, 31, v2')
    a('v_lshrrev_b32 v6, 5, v2')
    a('s_mul_i32 s46, s41, 7')
    a('s_lshl_b32 s47, s44, 2')
    for q in range(2):
        a('v_add_u32 v7, %d, v6' % (2 * q))
        a('v_add_u32 v7, s47, v7')
        a('v_add_u32 v8, s46, v7')
        a('v_mul_u32_u24 v9, 0x5556, v8')
        a('v_lshrrev_b32 v9, 16, v9')
        a('v_mul_u32_u24 v9, 3, v9')
        a('v_sub_u32 v9, v8, v9')
        a('v_cmp_eq_u32 vcc, 2, v9')
        a('v_mov_b32 v12, 0x3f80')
        a('v_cndmask_b32 v12, 0, v12, vcc')
        a('v_mov_b32 v13, 0')
        a('v_cndmask_b32 v10, 0, 12, vcc')
        a('v_xor_b32 v10, v10, v5')
        a('v_lshlrev_b32 v10, 4, v10')
        a('v_lshl_add_u32 v10, v8, 17, v10')
        a('v_add_u32 v10, %d, v10' % (3 * 512 + 8))
        a('v_cmp_gt_u32 vcc, 7, v7')
        a('v_mov_b32 v11, 0x7f000000')
        a('v_cndmask_b32 v10, v11, v10, vcc')
        a('buffer_store_dwordx2 v[12:13], v10, s[32:35], s45 offen')
    st.flush(0)
    a.label('L_end_%s' % kname)
    a('s_endpgm')
    return dict(name=kname, grid=NWG, block=NW * 64, lds=LDS)


def proj3(a, kname):
    NW, NB, MBX = 4, 7, 4
    WP, OP = D * 2, 2 * D * 2
    NWG = 8 * NB * MBX
    NKS = 14
    NF = 4
    EOFF = NKS * 2048 + 8
    LDS = 2 * NKS * 2048 + 16
    header(a, kname, NWG)
    vm = Ctr(a, 'vmcnt', 63)
    lg = Ctr(a, 'lgkmcnt', 15)
    st = Stamps(a, lg)
    st()
    prologue_ptrs(a)
    a('v_lshrrev_b32 v1, 6, v0')
    a('v_and_b32 v2, 63, v0')
    a('v_readfirstlane_b32 s40, v1')
    a('s_and_b32 s36, s2, 7')
    a('s_lshr_b32 s37, s2, 3')
    a('s_lshr_b32 s38, s36, 2')
    a('s_and_b32 s36, s36, 3')
    a('s_mul_i32 s39, s37, 37')
    a('s_lshr_b32 s39, s39, 8')
    a('s_mul_i32 s41, s39, %d' % NB)
    a('s_sub_u32 s41, s37, s41')
    a('s_mul_i32 s42, s36, %d' % MBX)
    a('s_add_u32 s42, s42, s39')
    a('s_lshl_b32 s43, s42, 3')
    a('s_lshl_b32 s44, s40, 1')
    a('s_add_u32 s43, s43, s44')
    a('s_lshl_b32 s47, s41, 7')
    a('v_and_b32 v3, 15, v2')
    a('v_lshrrev_b32 v4, 4, v2')
    a('s_mul_i32 s44, s43, %d' % (56 * 256))
    a('v_lshlrev_b32 v6, 4, v2')
    a('v_add_u32 v6, s44, v6')
    a('v_add_u32 v11, %d, v6' % (56 * 256))
    a('s_lshl_b32 s44, s43, 4')
    a('v_add_u32 v5, s44, v3')
    a('v_mul_u32_u24 v7, %d, v5' % OP)
    a('v_lshl_add_u32 v7, v4, 4, v7')
    a('v_add_u32 v7, s47, v7')
    a('s_mov_b32 s48, %d' % (16 * OP))
    a('v_lshrrev_b32 v5, 3, v2')
    a('s_lshl_b32 s46, s40, 3')
    a('v_add_u32 v9, s46, v5')
    a('v_mul_u32_u24 v9, %d, v9' % WP)
    a('v_bfe_u32 v8, v5, 1, 1')
    a('v_lshlrev_b32 v8, 2, v8')
    a('v_and_b32 v12, 7, v2')
    a('v_xor_b32 v8, v8, v12')
    a('v_lshl_add_u32 v9, v8, 4, v9')
    a('v_add_u32 v9, s47, v9')
    a('s_and_b32 s45, s40, 1')
    a('s_mul_i32 s45, s45, %d' % EOFF)
    a('s_lshr_b32 s49, s40, 1')
    a('s_lshl_b32 s49, s49, 10')
    a('s_add_u32 s45, s45, s49')
    a('v_and_b32 v10, 1, v4')
    a('v_mul_u32_u24 v10, %d, v10' % EOFF)
    a('v_lshrrev_b32 v8, 1, v4')
    a('v_lshl_add_u32 v10, v8, 10, v10')
    a('v_lshrrev_b32 v8, 2, v3')
    a('v_lshl_add_u32 v10, v8, 7, v10')
    a('v_and_b32 v12, 3, v2')
    a('v_lshl_add_u32 v10, v12, 4, v10')
    a('v_lshrrev_b32 v8, 1, v8')
    a('v_lshl_add_u32 v10, v8, 6, v10')
    a('v_xor_b32 v12, 64, v10')
    a('s_waitcnt lgkmcnt(0)')
    a('s_cmp_eq_u32 s38, 0')
    a('s_cselect_b32 s54, s8, s14')
    a('s_cselect_b32 s55, s9, s15')
    srd(a, 28, 's54', 's55', str(D * D * 2))
    a('s_mul_i32 s56, s38, %d' % O_BR)
    a('s_add_u32 s56, s56, %d' % O_OFF)
    a('s_add_u32 s52, s20, s56')
    a('s_addc_u32 s53, s21, 0')
    srd(a, 24, 's52', 's53', str(O_BR))
    a('s_mul_i32 s56, s38, %d' % (D * 2))
    a('s_add_u32 s52, s16, s56')
    a('s_addc_u32 s53, s17, 0')
    a('s_sub_u32 s57, %d, s56' % OUT_BYTES)
    srd(a, 32, 's52', 's53', 's57')
    XB = 16
    WB = XB + NKS * 8
    AC = WB + 2 * NF * 4
    def xr(ks, rt): b = XB + (ks * 2 + rt) * 4; return 'v[%d:%d]' % (b, b + 3)
    def wr(ks, f): return WB + ((ks & 1) * NF + f) * 4
    def ac(f, rt): return AC + (f * 2 + rt) * 4
    st()
    seq = {}
    a('s_mov_b32 s51, 0')
    a('s_mov_b32 s59, 0')
    for ks in range(NKS):
        a('s_mov_b32 m0, s45')
        a('buffer_load_dwordx4 v9, s[28:31], s51 offen lds'); vm.issue()
        a('buffer_load_dwordx4 %s, v6, s[24:27], s59 offen' % xr(ks, 0)); vm.issue()
        a('buffer_load_dwordx4 %s, v11, s[24:27], s59 offen' % xr(ks, 1)); seq[ks] = vm.issue()
        if ks + 1 < NKS:
            a('s_add_u32 s45, s45, 2048')
            a('s_add_u32 s51, s51, %d' % (32 * WP))
            a('s_add_u32 s59, s59, 1024')
    rseq = {}
    def reads(ks, f):
        tp, t = f >> 1, f & 1
        b = wr(ks, f)
        off = ks * 2048 + 8 * t
        ad = 'v12' if tp else 'v10'
        a('ds_read_b64_tr_b16 v[%d:%d], %s offset:%d' % (b, b + 1, ad, off)); lg.issue()
        a('ds_read_b64_tr_b16 v[%d:%d], %s offset:%d' % (b + 2, b + 3, ad, off + 512)); rseq[(ks, f)] = lg.issue()
    st()
    vm.wait(seq[1]); a('s_barrier')
    st()
    for f in range(NF): reads(0, f)
    for ks in range(NKS):
        if ks + 1 < NKS and (ks + 1) % 2 == 0:
            vm.wait(seq[ks + 2]); a('s_barrier')
            if ks in (3, 7, 11): st()
        for f in range(NF):
            lg.wait(rseq[(ks, f)])
            b = wr(ks, f)
            for rt in range(2):
                c = ac(f, rt)
                cs = '0' if ks == 0 else 'v[%d:%d]' % (c, c + 3)
                a('v_mfma_f32_16x16x32_bf16 v[%d:%d], v[%d:%d], %s, %s' % (c, c + 3, b, b + 3, xr(ks, rt), cs))
            if ks + 1 < NKS:
                reads(ks + 1, f)
    st()
    for tp in range(2):
        for rt in range(2):
            c0, c1 = ac(2 * tp, rt), ac(2 * tp + 1, rt)
            o = XB + (tp * 2 + rt) * 4
            a('v_cvt_pk_bf16_f32 v%d, v%d, v%d' % (o, c0, c0 + 1))
            a('v_cvt_pk_bf16_f32 v%d, v%d, v%d' % (o + 1, c0 + 2, c0 + 3))
            a('v_cvt_pk_bf16_f32 v%d, v%d, v%d' % (o + 2, c1, c1 + 1))
            a('v_cvt_pk_bf16_f32 v%d, v%d, v%d' % (o + 3, c1 + 2, c1 + 3))
            a('buffer_store_dwordx4 v[%d:%d], v7, s[32:35], %s offen offset:%d' % (o, o + 3, 's48' if rt else '0', tp * 64))
    st.flush(2)
    a.label('L_end_%s' % kname)
    a('s_endpgm')
    return dict(name=kname, grid=NWG, block=NW * 64, lds=LDS)


if __name__ == '__main__':
    if len(sys.argv) > 2 and sys.argv[2] == 'stamp':
        gen.STAMP = True
    dst = sys.argv[1] if len(sys.argv) > 1 else 'cdna_kernels/%s.s' % NAME
    open(dst, 'w').write(build([lambda a: qkv3(a, 'qkv_kernel'), lambda a: attn(a, 'attn_kernel'), lambda a: proj3(a, 'proj_kernel')]))
```

```python
import sys, math, struct
from asmdsl import Asm
import gen, gen2, gen3
from gen import Ctr, srd, prologue_ptrs, Stamps, HEADER, NAME
from gen2 import *
from gen3 import proj3


def qkv4(a, kname):
    NB, MBX = 7, 4
    NWG = 8 * NB * MBX
    NKS, NST, NSLOT = 14, 7, 3
    NF, NR = 6, 4
    WP = WQKV_PITCH
    WSLOT = 24576
    XOFF = NSLOT * WSLOT
    XSLOT = 16384
    LDS = XOFF + NSLOT * XSLOT
    header(a, kname, NWG)
    vm = Ctr(a, 'vmcnt', 63)
    lg = Ctr(a, 'lgkmcnt', 15)
    st = Stamps(a, lg)
    st()
    prologue_ptrs(a)
    a('v_lshrrev_b32 v1, 6, v0')
    a('v_and_b32 v2, 63, v0')
    a('v_readfirstlane_b32 s40, v1')
    a('s_and_b32 s36, s2, 7')
    a('s_lshr_b32 s37, s2, 3')
    a('s_lshr_b32 s38, s36, 2')
    a('s_and_b32 s36, s36, 3')
    a('s_mul_i32 s39, s37, 37')
    a('s_lshr_b32 s39, s39, 8')
    a('s_mul_i32 s41, s39, %d' % NB)
    a('s_sub_u32 s41, s37, s41')
    a('s_mul_i32 s42, s36, %d' % MBX)
    a('s_add_u32 s42, s42, s39')
    a('s_and_b32 s43, s40, 3')
    a('v_and_b32 v3, 15, v2')
    a('v_lshrrev_b32 v4, 4, v2')
    a('s_cmp_ge_u32 s40, 4')
    a('s_cbranch_scc1 L_load_%s' % kname)
    a('s_and_b32 s44, s43, 1')
    a('s_lshr_b32 s45, s43, 1')
    a('v_lshrrev_b32 v12, 1, v3')
    a('v_xor_b32 v12, v12, v4')
    a('v_lshlrev_b32 v12, 4, v12')
    a('v_lshl_add_u32 v12, v3, 7, v12')
    a('s_lshl_b32 s46, s44, 13')
    a('s_add_u32 s46, s46, %d' % XOFF)
    a('v_add_u32 v12, s46, v12')
    a('v_xor_b32 v13, 64, v12')
    a('v_mul_u32_u24 v5, 3072, v4')
    a('v_lshrrev_b32 v7, 2, v3')
    a('v_lshl_add_u32 v5, v7, 7, v5')
    a('v_and_b32 v8, 3, v2')
    a('v_lshl_add_u32 v5, v8, 3, v5')
    a('v_and_b32 v7, 2, v7')
    a('v_and_b32 v8, 1, v4')
    a('v_or_b32 v7, v7, v8')
    a('s_mul_i32 s49, s45, 6')
    WA = [6, 9, 10, 11, 14, 15]
    for i in range(6):
        a('s_add_u32 s50, s49, %d' % i)
        a('s_lshr_b32 s51, s50, 2')
        a('s_and_b32 s50, s50, 3')
        a('s_lshl_b32 s51, s51, 10')
        a('v_xor_b32 v8, s50, v7')
        a('v_lshlrev_b32 v8, 5, v8')
        a('v_add3_u32 v%d, v5, v8, s51' % WA[i])
    a('s_waitcnt lgkmcnt(0)')
    a('s_mul_i32 s56, s38, %d' % (H * 3 * HB))
    a('s_add_u32 s52, s20, s56')
    a('s_addc_u32 s53, s21, 0')
    srd(a, 32, 's52', 's53', str(H * 3 * HB))
    XB = 16
    WB = XB + 2 * NR * 4
    AC = WB + 2 * NF * 4
    TMP = AC + NF * NR * 4
    def xr(ks, rt): return XB + ((ks & 1) * NR + rt) * 4
    def wr(ks, f): return WB + ((ks & 1) * NF + f) * 4
    def ac(f, rt): return AC + (f * NR + rt) * 4
    a('s_lshl_b32 s58, s42, 2')
    a('s_lshl_b32 s47, s44, 1')
    a('s_add_u32 s58, s58, s47')
    a('s_lshl_b32 s58, s58, 11')
    a('s_add_u32 s59, s58, 2048')
    a('s_mul_i32 s46, s41, 192')
    a('s_mul_i32 s47, s45, 96')
    a('s_add_u32 s46, s46, s47')
    a('s_mov_b32 s55, 0x%08x' % CBITS)
    a('s_mov_b32 s50, 9363')
    a('v_lshlrev_b32 v5, 2, v4')
    a('v_add_u32 v5, s46, v5')
    for f in range(NF):
        a('v_add_u32 v1, %d, v5' % (f * 16))
        a('v_mul_u32_u24 v7, s50, v1')
        a('v_lshrrev_b32 v7, 18, v7')
        a('v_mul_u32_u24 v8, 28, v7')
        a('v_sub_u32 v8, v1, v8')
        a('v_lshrrev_b32 v1, 4, v7')
        a('v_and_b32 v7, 15, v7')
        a('v_mul_u32_u24 v7, 3, v7')
        a('v_add_u32 v7, v7, v1')
        a('v_lshlrev_b32 v7, 17, v7')
        a('v_lshl_add_u32 v7, v8, 6, v7')
        a('v_cmp_eq_u32 vcc, 2, v1')
        a('v_cndmask_b32 v8, 0, v8, vcc')
        a('v_xor_b32 v8, v8, v3')
        a('v_lshl_add_u32 v%d, v8, 3, v7' % (TMP + f))
        a('v_xor_b32 v%d, 128, v%d' % (TMP + 6 + f, TMP + f))
        a('v_cmp_eq_u32 vcc, 0, v1')
        a('v_mov_b32 v7, 1.0')
        a('v_mov_b32 v8, s55')
        a('v_cndmask_b32 v%d, v7, v8, vcc' % (TMP + 12 + f))
    st()
    rseq, xseq = {}, {}
    def wreads(ks, f):
        b = wr(ks, f)
        off = ((ks >> 1) % NSLOT) * WSLOT + (ks & 1) * 12288
        a('ds_read_b64_tr_b16 v[%d:%d], v%d offset:%d' % (b, b + 1, WA[f], off)); lg.issue()
        a('ds_read_b64_tr_b16 v[%d:%d], v%d offset:%d' % (b + 2, b + 3, WA[f], off + 512)); rseq[(ks, f)] = lg.issue()
    def xread(ks, rt):
        b = xr(ks, rt)
        a('ds_read_b128 v[%d:%d], %s offset:%d' % (b, b + 3, 'v13' if ks & 1 else 'v12', ((ks >> 1) % NSLOT) * XSLOT + rt * 2048)); xseq[(ks, rt)] = lg.issue()
    st()
    a('s_barrier')
    st()
    for rt in range(NR): xread(0, rt)
    for f in range(5): wreads(0, f)
    lg.wait(xseq[(0, 1)])
    wreads(0, 5)
    for ks in range(NKS):
        nxt = ks + 1 < NKS
        if nxt and (ks + 1) % 2 == 0:
            lg.wait(lg.issued)
            a('s_barrier')
            if (ks + 1) // 2 in (2, 4, 6): st()
        for f in range(NF):
            lg.wait(rseq[(ks, f)])
            if f == 0: lg.wait(xseq[(ks, NR - 1)])
            b = wr(ks, f)
            for rt in range(NR):
                c = ac(f, rt); xb = xr(ks, rt)
                cs = '0' if ks == 0 else 'v[%d:%d]' % (c, c + 3)
                a('v_mfma_f32_16x16x32_bf16 v[%d:%d], v[%d:%d], v[%d:%d], %s' % (c, c + 3, b, b + 3, xb, xb + 3, cs))
                if nxt and rt == 1:
                    wreads(ks + 1, f)
                if nxt and rt == 3 and f < NR:
                    xread(ks + 1, f)
    st()
    for f in range(NF):
        for rt in range(NR):
            c = ac(f, rt)
            o = XB + ((f * NR + rt) % 16) * 2
            sc = TMP + 12 + f
            for j in range(4):
                a('v_mul_f32 v%d, v%d, v%d' % (c + j, c + j, sc))
            a('v_cvt_pk_bf16_f32 v%d, v%d, v%d' % (o, c, c + 1))
            a('v_cvt_pk_bf16_f32 v%d, v%d, v%d' % (o + 1, c + 2, c + 3))
            a('buffer_store_dwordx2 v[%d:%d], v%d, s[32:35], %s offen' % (o, o + 1, TMP + 6 * (rt & 1) + f, 's59' if rt >= 2 else 's58'))
    st.flush(0)
    a('s_endpgm')
    a.label('L_load_%s' % kname)
    a.reset_hazards()
    a('v_lshrrev_b32 v5, 3, v2')
    a('v_and_b32 v8, 7, v2')
    a('s_lshl_b32 s45, s42, 7')
    a('s_lshl_b32 s46, s43, 5')
    a('s_add_u32 s45, s45, s46')
    a('v_add_u32 v6, s45, v5')
    a('v_mul_u32_u24 v6, %d, v6' % (D * 2))
    a('v_lshrrev_b32 v7, 1, v5')
    a('v_xor_b32 v9, v7, v8')
    a('v_lshl_add_u32 v11, v9, 4, v6')
    a('v_xor_b32 v9, 4, v9')
    a('v_lshl_add_u32 v6, v9, 4, v6')
    a('v_add_u32 v6, %d, v6' % (8 * D * 2))
    a('s_lshl_b32 s58, s43, 12')
    a('s_add_u32 s58, s58, %d' % XOFF)
    a('s_lshl_b32 s46, s43, 4')
    a('v_add_u32 v9, s46, v5')
    a('v_mul_u32_u24 v9, %d, v9' % WP)
    a('s_mul_i32 s47, s41, 384')
    a('v_add_u32 v9, s47, v9')
    a('v_and_b32 v7, 1, v7')
    a('v_lshlrev_b32 v7, 2, v7')
    a('v_xor_b32 v7, v7, v8')
    a('v_lshl_add_u32 v10, v7, 4, v9')
    a('v_xor_b32 v7, 2, v7')
    a('v_lshl_add_u32 v9, v7, 4, v9')
    a('v_add_u32 v9, %d, v9' % (8 * WP))
    a('s_mul_i32 s48, s43, 6144')
    a('s_waitcnt lgkmcnt(0)')
    a('s_cmp_eq_u32 s38, 0')
    a('s_cselect_b32 s52, s4, s10')
    a('s_cselect_b32 s53, s5, s11')
    a('s_cselect_b32 s54, s6, s12')
    a('s_cselect_b32 s55, s7, s13')
    srd(a, 24, 's52', 's53', str(X_BYTES))
    srd(a, 28, 's54', 's55', str(D * WP))
    a('s_mul_i32 s56, s38, %d' % (H * 3 * HB))
    a('s_add_u32 s52, s20, s56')
    a('s_addc_u32 s53, s21, 0')
    srd(a, 32, 's52', 's53', str(H * 3 * HB))
    vm2 = Ctr(a, 'vmcnt', 63)
    seq = {}
    def dma(sg):
        sl = sg % NSLOT
        for e in range(2):
            for i in range(3):
                a('s_add_u32 s57, s48, %d' % (sl * WSLOT + e * 3072 + i * 1024))
                a('s_mov_b32 m0, s57')
                a('s_mov_b32 s59, %d' % (sg * 64 * WP + i * 128))
                a('buffer_load_dwordx4 %s, s[28:31], s59 offen lds' % ('v9' if e else 'v10')); vm2.issue()
        for i in range(4):
            a('s_add_u32 s57, s58, %d' % (sl * XSLOT + i * 1024))
            a('s_mov_b32 m0, s57')
            a('s_mov_b32 s59, %d' % (sg * 128 + (i >> 1) * 16 * D * 2))
            a('buffer_load_dwordx4 %s, s[24:27], s59 offen lds' % ('v6' if i & 1 else 'v11')); seq[sg] = vm2.issue()
    for sg in range(NSLOT): dma(sg)
    a('v_and_b32 v5, 31, v2')
    a('v_lshrrev_b32 v7, 5, v2')
    a('s_mul_i32 s46, s41, 7')
    a('s_lshl_b32 s45, s42, 2')
    a('s_add_u32 s45, s45, s43')
    a('s_lshl_b32 s45, s45, 11')
    pads = []
    for q in range(4):
        a('v_add_u32 v12, %d, v7' % (2 * q))
        a('v_add_u32 v8, s46, v12')
        a('v_mul_u32_u24 v13, 0x5556, v8')
        a('v_lshrrev_b32 v13, 16, v13')
        a('v_mul_u32_u24 v13, 3, v13')
        a('v_sub_u32 v13, v8, v13')
        a('v_cmp_eq_u32 vcc, 2, v13')
        d0 = 16 + 4 * q
        a('v_mov_b32 v%d, 0x3f80' % d0)
        a('v_cndmask_b32 v%d, 0, v%d, vcc' % (d0, d0))
        a('v_mov_b32 v%d, 0' % (d0 + 1))
        a('v_cndmask_b32 v13, 0, 28, vcc')
        a('v_xor_b32 v13, v13, v5')
        a('v_lshlrev_b32 v13, 3, v13')
        a('v_lshl_add_u32 v13, v8, 17, v13')
        a('v_add_u32 v13, %d, v13' % (7 * 256))
        a('v_cmp_gt_u32 vcc, 7, v12')
        a('v_mov_b32 v14, 0x7f000000')
        a('v_cndmask_b32 v%d, v14, v13, vcc' % (d0 + 2))
        pads.append(d0)
    for sg in range(NST):
        vm2.wait(seq[sg])
        a('s_barrier')
        if sg >= 1 and sg + 2 < NST: dma(sg + 2)
    for d0 in pads:
        a('buffer_store_dwordx2 v[%d:%d], v%d, s[32:35], s45 offen' % (d0, d0 + 1, d0 + 2))
    a.label('L_end_%s' % kname)
    a('s_endpgm')
    return dict(name=kname, grid=NWG, block=512, lds=LDS)


def attn4(a, kname):
    NWG = 256
    KB, VB = 0, 32768
    LDS = 65536
    header(a, kname, NWG)
    vm = Ctr(a, 'vmcnt', 63)
    lg = Ctr(a, 'lgkmcnt', 15)
    st = Stamps(a, lg)
    st()
    prologue_ptrs(a)
    a('v_lshrrev_b32 v1, 6, v0')
    a('v_and_b32 v2, 63, v0')
    a('v_readfirstlane_b32 s40, v1')
    a('s_and_b32 s36, s2, 7')
    a('s_lshr_b32 s37, s2, 3')
    a('s_lshr_b32 s38, s36, 2')
    a('s_and_b32 s36, s36, 3')
    a('s_and_b32 s39, s37, 15')
    a('s_lshr_b32 s41, s37, 4')
    a('s_lshl_b32 s42, s36, 1')
    a('s_add_u32 s42, s42, s41')
    a('v_and_b32 v3, 31, v2')
    a('v_lshrrev_b32 v4, 5, v2')
    a('v_lshlrev_b32 v5, 4, v2')
    a('s_lshl_b32 s43, s42, 14')
    a('s_lshl_b32 s44, s40, 12')
    a('s_add_u32 s45, s43, s44')
    a('s_sub_u32 s45, s45, 16384')
    a('v_add_u32 v7, s45, v5')
    a('v_lshlrev_b32 v6, 3, v3')
    a('v_lshl_add_u32 v6, v4, 9, v6')
    a('s_lshl_b32 s46, s40, 11')
    a('s_add_u32 s47, s43, s46')
    a('v_add_u32 v10, s47, v6')
    a('v_add_u32 v12, s46, v6')
    a('v_bfe_u32 v6, v2, 4, 1')
    a('v_and_b32 v8, 3, v2')
    a('v_lshl_add_u32 v6, v6, 2, v8')
    a('v_bfe_u32 v8, v2, 2, 2')
    a('v_lshl_add_u32 v8, v4, 2, v8')
    a('v_lshlrev_b32 v9, 2, v6')
    a('v_xor_b32 v8, v8, v9')
    a('v_lshlrev_b32 v9, 8, v6')
    a('v_add_u32 v9, s46, v9')
    a('v_add_u32 v9, %d, v9' % VB)
    a('v_lshl_add_u32 v13, v8, 3, v9')
    a('v_xor_b32 v14, 64, v13')
    a('v_xor_b32 v15, 128, v13')
    a('v_xor_b32 v1, 192, v13')
    a('s_mul_i32 s48, s39, 7')
    a('v_add_u32 v8, s48, v4')
    a('v_lshrrev_b32 v9, 1, v8')
    a('v_lshlrev_b32 v9, 8, v9')
    a('v_and_b32 v8, 1, v8')
    a('v_lshl_add_u32 v9, v8, 3, v9')
    a('v_and_b32 v8, 15, v3')
    a('v_lshl_add_u32 v9, v8, 4, v9')
    a('s_lshl_b32 s49, s42, 4')
    a('s_lshl_b32 s50, s40, 1')
    a('s_add_u32 s49, s49, s50')
    a('v_lshrrev_b32 v8, 4, v3')
    a('v_add_u32 v8, s49, v8')
    a('v_mul_u32_u24 v8, %d, v8' % (56 * 256))
    a('v_add_u32 v11, v8, v9')
    a('s_waitcnt lgkmcnt(0)')
    a('s_lshl_b32 s56, s38, 4')
    a('s_add_u32 s56, s56, s39')
    a('s_mul_i32 s56, s56, %d' % (3 * HB))
    a('s_add_u32 s52, s20, s56')
    a('s_addc_u32 s53, s21, 0')
    srd(a, 24, 's52', 's53', str(HB))
    a('s_add_u32 s52, s52, %d' % HB)
    a('s_addc_u32 s53, s53, 0')
    srd(a, 28, 's52', 's53', str(HB))
    a('s_add_u32 s52, s52, %d' % HB)
    a('s_addc_u32 s53, s53, 0')
    srd(a, 32, 's52', 's53', str(HB))
    a('s_mul_i32 s56, s38, %d' % O_BR)
    a('s_add_u32 s56, s56, %d' % O_OFF)
    a('s_add_u32 s52, s20, s56')
    a('s_addc_u32 s53, s21, 0')
    srd(a, 60, 's52', 's53', str(O_BR))
    SB = 16
    FR = 160
    QR = 232
    OA = 240
    def sr(t): return SB + 16 * t
    st()
    for i in range(4):
        a('s_add_u32 s54, s44, %d' % (KB + i * 1024))
        a('s_mov_b32 m0, s54')
        a('v_add_u32 v8, %d, v7' % (i * 1024))
        a('buffer_load_dwordx4 v8, s[28:31], 0 offen lds'); vm.issue()
    for j in range(2):
        for e in range(2):
            a('buffer_load_dwordx2 v[%d:%d], v10, s[24:27], 0 offen offset:%d' % (QR + 4 * j + 2 * e, QR + 4 * j + 2 * e + 1, j * 1024 + e * 256)); kqseq = vm.issue()
    for i in range(4):
        a('s_add_u32 s54, s44, %d' % (VB + i * 1024))
        a('s_mov_b32 m0, s54')
        a('v_add_u32 v8, %d, v7' % (i * 1024))
        a('buffer_load_dwordx4 v8, s[32:35], 0 offen lds'); vm.issue()
    a('v_lshlrev_b32 v5, 2, v4')
    a('v_sub_u32 v5, v3, v5')
    a('v_mov_b32 v6, 0xff800000')
    for r in range(16):
        bb = 8 * (r >> 2) + (r & 3)
        a('v_cmp_le_i32 vcc, %d, v5' % bb)
        a('v_cndmask_b32 v%d, 0, v6, vcc' % (sr(0) + r))
        a('v_cndmask_b32 v%d, v6, 0, vcc' % (sr(8) + r))
    st()
    vm.wait(kqseq)
    a('s_barrier')
    st()
    kseq = {}
    def kread(t, j):
        b = FR + (2 * t + j) * 4
        off = KB + t * 2048 + j * 1024
        a('ds_read_b64 v[%d:%d], v12 offset:%d' % (b, b + 1, off)); lg.issue()
        a('ds_read_b64 v[%d:%d], v12 offset:%d' % (b + 2, b + 3, off + 256)); kseq[(t, j)] = lg.issue()
    order = [(t, j) for t in range(9) for j in range(2)]
    for (t, j) in order[:7]: kread(t, j)
    for idx, (t, j) in enumerate(order):
        lg.wait(kseq[(t, j)])
        b = FR + (2 * t + j) * 4
        s = sr(t)
        c = '0' if (j == 0 and t not in (0, 8)) else 'v[%d:%d]' % (s, s + 15)
        a('v_mfma_f32_32x32x16_bf16 v[%d:%d], v[%d:%d], v[%d:%d], %s' % (s, s + 15, b, b + 3, QR + 4 * j, QR + 4 * j + 3, c))
        if idx + 7 < 18: kread(*order[idx + 7])
    vm.wait(vm.issued)
    a('s_barrier')
    vseq = {}
    def vread(t, j):
        b = FR + (2 * t + j) * 4
        off = t * 2048
        a('ds_read_b64_tr_b16 v[%d:%d], %s offset:%d' % (b, b + 1, 'v15' if j else 'v13', off)); lg.issue()
        a('ds_read_b64_tr_b16 v[%d:%d], %s offset:%d' % (b + 2, b + 3, 'v1' if j else 'v14', off)); vseq[(t, j)] = lg.issue()
    a('s_cmp_lg_u32 s42, 0')
    a('s_cbranch_scc1 L_nofix_%s' % kname)
    a.nop(14)
    for t in range(8):
        a('s_cmp_ge_u32 s40, %d' % (8 - t))
        a('s_cbranch_scc1 L_nofix_%s' % kname)
        for r in range(16):
            a('v_mov_b32 v%d, v6' % (sr(t) + r))
    a.label('L_nofix_%s' % kname)
    a.nop(14)
    for (t, j) in order[:6]: vread(t, j)
    st()
    M0_, M1_, T_ = 5, 6, 7
    regs = [sr(t) + r for t in range(9) for r in range(16)]
    half = len(regs) // 2
    for m, rr in ((M0_, regs[:half]), (M1_, regs[half:])):
        a('v_max3_f32 v%d, v%d, v%d, v%d' % (m, rr[0], rr[1], rr[2]))
    i = 3
    while i + 1 < half:
        for m, rr in ((M0_, regs[:half]), (M1_, regs[half:])):
            a('v_max3_f32 v%d, v%d, v%d, v%d' % (m, m, rr[i], rr[i + 1]))
        i += 2
    a('v_max3_f32 v%d, v%d, v%d, v%d' % (M0_, M0_, regs[half - 1], regs[-1]))
    a('v_max_f32 v%d, v%d, v%d' % (M0_, M0_, M1_))
    a('v_mov_b32 v%d, v%d' % (T_, M0_))
    a('v_permlane32_swap_b32 v%d, v%d' % (T_, M0_))
    a('v_max_f32 v%d, v%d, v%d' % (M0_, M0_, T_))
    st()
    for idx, (t, j) in enumerate(order):
        r0 = sr(t) + 8 * j
        for k in range(8):
            a('v_sub_f32 v%d, v%d, v%d' % (r0 + k, r0 + k, M0_))
        for k in range(8):
            a('v_exp_f32 v%d, v%d' % (r0 + k, r0 + k))
        for k in range(4):
            a('v_cvt_pk_bf16_f32 v%d, v%d, v%d' % (r0 + k, r0 + 2 * k, r0 + 2 * k + 1))
        lg.wait(vseq[(t, j)])
        b = FR + (2 * t + j) * 4
        c = '0' if idx == 0 else 'v[%d:%d]' % (OA, OA + 15)
        a('v_mfma_f32_32x32x16_bf16 v[%d:%d], v[%d:%d], v[%d:%d], %s' % (OA, OA + 15, b, b + 3, r0, r0 + 3, c))
        if idx + 6 < 18: vread(*order[idx + 6])
    st()
    a('v_cmp_eq_u32 vcc, 0, v4')
    a('v_mov_b32 v5, 0x7f000000')
    a('v_cndmask_b32 v15, v5, v11, vcc')
    a('v_mov_b32 v5, v%d' % (OA + 12))
    a('v_mov_b32 v6, v%d' % (OA + 12))
    a('v_permlane32_swap_b32 v5, v6')
    a('v_rcp_f32 v6, v6')
    for i in range(4):
        o = OA + 4 * i
        for k in range(4):
            a('v_mul_f32 v%d, v%d, v6' % (o + k, o + k))
        a('v_cvt_pk_bf16_f32 v%d, v%d, v%d' % (o, o, o + 1))
        a('v_cvt_pk_bf16_f32 v%d, v%d, v%d' % (o + 1, o + 2, o + 3))
        a('buffer_store_dwordx2 v[%d:%d], %s, s[60:63], 0 offen offset:%d' % (o, o + 1, 'v15' if i == 3 else 'v11', i * 256))
    st.flush(1)
    a.label('L_end_%s' % kname)
    a('s_endpgm')
    return dict(name=kname, grid=NWG, block=512, lds=LDS)


if __name__ == '__main__':
    if len(sys.argv) > 2 and sys.argv[2] == 'stamp':
        gen.STAMP = True
    dst = sys.argv[1] if len(sys.argv) > 1 else 'cdna_kernels/%s.s' % NAME
    open(dst, 'w').write(build([lambda a: qkv4(a, 'qkv_kernel'), lambda a: attn4(a, 'attn_kernel'), lambda a: proj3(a, 'proj_kernel')]))
```

```python
import sys, math, struct
from asmdsl import Asm
import gen, gen2, gen3
from gen import Ctr, srd, prologue_ptrs, Stamps, HEADER, NAME
from gen2 import *
from gen3 import proj3


TOUCH = True
OTOUCH = True
OTOUCH1 = True


def qkv4(a, kname):
    NB, MBX = 7, 4
    NWG = 8 * NB * MBX
    NKS, NST, NSLOT = 14, 7, 3
    NF, NR = 6, 4
    WP = WQKV_PITCH
    WSLOT = 24576
    XOFF = NSLOT * WSLOT
    XSLOT = 16384
    LDS = XOFF + NSLOT * XSLOT
    header(a, kname, NWG)
    vm = Ctr(a, 'vmcnt', 63)
    lg = Ctr(a, 'lgkmcnt', 15)
    st = Stamps(a, lg)
    st()
    prologue_ptrs(a)
    a('v_lshrrev_b32 v1, 6, v0')
    a('v_and_b32 v2, 63, v0')
    a('v_readfirstlane_b32 s40, v1')
    a('s_and_b32 s36, s2, 7')
    a('s_lshr_b32 s37, s2, 3')
    a('s_lshr_b32 s38, s36, 2')
    a('s_and_b32 s36, s36, 3')
    a('s_mul_i32 s39, s37, 37')
    a('s_lshr_b32 s39, s39, 8')
    a('s_mul_i32 s41, s39, %d' % NB)
    a('s_sub_u32 s41, s37, s41')
    a('s_mul_i32 s42, s36, %d' % MBX)
    a('s_add_u32 s42, s42, s39')
    a('s_and_b32 s43, s40, 3')
    a('v_and_b32 v3, 15, v2')
    a('v_lshrrev_b32 v4, 4, v2')
    a('s_cmp_ge_u32 s40, 4')
    a('s_cbranch_scc1 L_load_%s' % kname)
    a('s_and_b32 s44, s43, 1')
    a('s_lshr_b32 s45, s43, 1')
    a('v_lshrrev_b32 v12, 1, v3')
    a('v_xor_b32 v12, v12, v4')
    a('v_lshlrev_b32 v12, 4, v12')
    a('v_lshl_add_u32 v12, v3, 7, v12')
    a('s_lshl_b32 s46, s44, 13')
    a('s_add_u32 s46, s46, %d' % XOFF)
    a('v_add_u32 v12, s46, v12')
    a('v_xor_b32 v13, 64, v12')
    a('v_mul_u32_u24 v5, 3072, v4')
    a('v_lshrrev_b32 v7, 2, v3')
    a('v_lshl_add_u32 v5, v7, 7, v5')
    a('v_and_b32 v8, 3, v2')
    a('v_lshl_add_u32 v5, v8, 3, v5')
    a('v_and_b32 v7, 2, v7')
    a('v_and_b32 v8, 1, v4')
    a('v_or_b32 v7, v7, v8')
    a('s_mul_i32 s49, s45, 6')
    WA = [6, 9, 10, 11, 14, 15]
    for i in range(6):
        a('s_add_u32 s50, s49, %d' % i)
        a('s_lshr_b32 s51, s50, 2')
        a('s_and_b32 s50, s50, 3')
        a('s_lshl_b32 s51, s51, 10')
        a('v_xor_b32 v8, s50, v7')
        a('v_lshlrev_b32 v8, 5, v8')
        a('v_add3_u32 v%d, v5, v8, s51' % WA[i])
    a('v_lshrrev_b32 v7, 2, v2')
    a('v_and_b32 v8, 3, v2')
    a('s_mul_i32 s46, s43, 5')
    a('v_add_u32 v1, s46, v7')
    a('v_mul_u32_u24 v1, 7, v1')
    a('s_lshl_b32 s46, s42, 7')
    a('s_add_u32 s46, s46, s41')
    a('v_add_u32 v1, s46, v1')
    a('v_mul_u32_u24 v1, %d, v1' % (D * 2))
    a('v_lshl_add_u32 v1, v8, 7, v1')
    a('v_add_u32 v1, 384, v1')
    a('v_cmp_gt_u32 vcc, 5, v7')
    a('v_mov_b32 v212, 0x7f000000')
    a('v_cndmask_b32 v212, v212, v1, vcc')
    a('s_and_b32 s46, s42, 3')
    a('s_lshl_b32 s46, s46, 6')
    a('s_lshl_b32 s47, s43, 4')
    a('s_add_u32 s46, s46, s47')
    a('s_add_u32 s46, s46, 192')
    a('v_add_u32 v1, s46, v7')
    a('v_mul_u32_u24 v1, %d, v1' % WP)
    a('s_mul_i32 s47, s41, 384')
    a('v_add_u32 v1, s47, v1')
    a('v_lshl_add_u32 v1, v8, 7, v1')
    a('v_cmp_gt_u32 vcc, 3, v8')
    a('v_mov_b32 v213, 0x7f000000')
    a('v_cndmask_b32 v213, v213, v1, vcc')
    a('s_waitcnt lgkmcnt(0)')
    a('s_cmp_eq_u32 s38, 0')
    a('s_cselect_b32 s52, s4, s10')
    a('s_cselect_b32 s53, s5, s11')
    a('s_cselect_b32 s54, s6, s12')
    a('s_cselect_b32 s55, s7, s13')
    srd(a, 24, 's52', 's53', str(X_BYTES))
    srd(a, 28, 's54', 's55', str(D * WP))
    a('s_mul_i32 s56, s38, %d' % (H * 3 * HB))
    a('s_add_u32 s52, s20, s56')
    a('s_addc_u32 s53, s21, 0')
    srd(a, 32, 's52', 's53', str(H * 3 * HB))
    XB = 16
    WB = XB + 2 * NR * 4
    AC = WB + 2 * NF * 4
    TMP = AC + NF * NR * 4
    assert TMP + 18 <= 212
    def xr(ks, rt): return XB + ((ks & 1) * NR + rt) * 4
    def wr(ks, f): return WB + ((ks & 1) * NF + f) * 4
    def ac(f, rt): return AC + (f * NR + rt) * 4
    a('s_lshl_b32 s58, s42, 2')
    a('s_lshl_b32 s47, s44, 1')
    a('s_add_u32 s58, s58, s47')
    a('s_lshl_b32 s58, s58, 11')
    a('s_add_u32 s59, s58, 2048')
    a('s_mul_i32 s46, s41, 192')
    a('s_mul_i32 s47, s45, 96')
    a('s_add_u32 s46, s46, s47')
    a('s_mov_b32 s55, 0x%08x' % CBITS)
    a('s_mov_b32 s50, 9363')
    a('v_lshlrev_b32 v5, 2, v4')
    a('v_add_u32 v5, s46, v5')
    for f in range(NF):
        a('v_add_u32 v1, %d, v5' % (f * 16))
        a('v_mul_u32_u24 v7, s50, v1')
        a('v_lshrrev_b32 v7, 18, v7')
        a('v_mul_u32_u24 v8, 28, v7')
        a('v_sub_u32 v8, v1, v8')
        a('v_lshrrev_b32 v1, 4, v7')
        a('v_and_b32 v7, 15, v7')
        a('v_mul_u32_u24 v7, 3, v7')
        a('v_add_u32 v7, v7, v1')
        a('v_lshlrev_b32 v7, 17, v7')
        a('v_lshl_add_u32 v7, v8, 6, v7')
        a('v_cmp_eq_u32 vcc, 2, v1')
        a('v_cndmask_b32 v8, 0, v8, vcc')
        a('v_xor_b32 v8, v8, v3')
        a('v_lshl_add_u32 v%d, v8, 3, v7' % (TMP + f))
        a('v_xor_b32 v%d, 128, v%d' % (TMP + 6 + f, TMP + f))
        a('v_cmp_eq_u32 vcc, 0, v1')
        a('v_mov_b32 v7, 1.0')
        a('v_mov_b32 v8, s55')
        a('v_cndmask_b32 v%d, v7, v8, vcc' % (TMP + 12 + f))
    if OTOUCH1:
        a('v_cmp_eq_u32 vcc, 0, v3')
        a('s_and_saveexec_b64 s[60:61], vcc')
        for f in range(NF):
            for rt in range(NR):
                a('buffer_load_dword v216, v%d, s[32:35], %s offen' % (TMP + 6 * (rt & 1) + f, 's59' if rt >= 2 else 's58'))
        a('s_mov_b64 exec, s[60:61]')
    def epi(f, rt):
        c = ac(f, rt)
        sc = TMP + 12 + f
        for j in range(4):
            a('v_mul_f32 v%d, v%d, v%d' % (c + j, c + j, sc))
        a('v_cvt_pk_bf16_f32 v%d, v%d, v%d' % (c, c, c + 1))
        a('v_cvt_pk_bf16_f32 v%d, v%d, v%d' % (c + 1, c + 2, c + 3))
        a('buffer_store_dwordx2 v[%d:%d], v%d, s[32:35], %s offen' % (c, c + 1, TMP + 6 * (rt & 1) + f, 's59' if rt >= 2 else 's58'))
    st()
    rseq, xseq = {}, {}
    def wreads(ks, f):
        b = wr(ks, f)
        off = ((ks >> 1) % NSLOT) * WSLOT + (ks & 1) * 12288
        a('ds_read_b64_tr_b16 v[%d:%d], v%d offset:%d' % (b, b + 1, WA[f], off)); lg.issue()
        a('ds_read_b64_tr_b16 v[%d:%d], v%d offset:%d' % (b + 2, b + 3, WA[f], off + 512)); rseq[(ks, f)] = lg.issue()
    def xread(ks, rt):
        b = xr(ks, rt)
        a('ds_read_b128 v[%d:%d], %s offset:%d' % (b, b + 3, 'v13' if ks & 1 else 'v12', ((ks >> 1) % NSLOT) * XSLOT + rt * 2048)); xseq[(ks, rt)] = lg.issue()
    st()
    a('s_barrier')
    st()
    if TOUCH:
        a('buffer_load_dword v214, v213, s[28:31], 0 offen')
        a('buffer_load_dword v215, v212, s[24:27], 0 offen')
    for rt in range(NR): xread(0, rt)
    for f in range(5): wreads(0, f)
    lg.wait(xseq[(0, 1)])
    wreads(0, 5)
    for ks in range(NKS):
        nxt = ks + 1 < NKS
        if nxt and (ks + 1) % 2 == 0:
            lg.wait(lg.issued)
            a('s_barrier')
            if (ks + 1) // 2 in (2, 4, 6): st()
        for f in range(NF):
            lg.wait(rseq[(ks, f)])
            if f == 0: lg.wait(xseq[(ks, NR - 1)])
            b = wr(ks, f)
            for rt in range(NR):
                c = ac(f, rt); xb = xr(ks, rt)
                cs = '0' if ks == 0 else 'v[%d:%d]' % (c, c + 3)
                a('v_mfma_f32_16x16x32_bf16 v[%d:%d], v[%d:%d], v[%d:%d], %s' % (c, c + 3, b, b + 3, xb, xb + 3, cs))
                if nxt and rt == 1:
                    wreads(ks + 1, f)
                if nxt and rt == 3 and f < NR:
                    xread(ks + 1, f)
                if not nxt and f >= 1:
                    epi(f - 1, rt)

    st()
    for rt in range(NR): epi(NF - 1, rt)
    st.flush(0)
    a('s_endpgm')
    a.label('L_load_%s' % kname)
    a.reset_hazards()
    a('v_lshrrev_b32 v5, 3, v2')
    a('v_and_b32 v8, 7, v2')
    a('s_lshl_b32 s45, s42, 7')
    a('s_lshl_b32 s46, s43, 5')
    a('s_add_u32 s45, s45, s46')
    a('v_add_u32 v6, s45, v5')
    a('v_mul_u32_u24 v6, %d, v6' % (D * 2))
    a('v_lshrrev_b32 v7, 1, v5')
    a('v_xor_b32 v9, v7, v8')
    a('v_lshl_add_u32 v11, v9, 4, v6')
    a('v_xor_b32 v9, 4, v9')
    a('v_lshl_add_u32 v6, v9, 4, v6')
    a('v_add_u32 v6, %d, v6' % (8 * D * 2))
    a('s_lshl_b32 s58, s43, 12')
    a('s_add_u32 s58, s58, %d' % XOFF)
    a('s_lshl_b32 s46, s43, 4')
    a('v_add_u32 v9, s46, v5')
    a('v_mul_u32_u24 v9, %d, v9' % WP)
    a('s_mul_i32 s47, s41, 384')
    a('v_add_u32 v9, s47, v9')
    a('v_and_b32 v7, 1, v7')
    a('v_lshlrev_b32 v7, 2, v7')
    a('v_xor_b32 v7, v7, v8')
    a('v_lshl_add_u32 v10, v7, 4, v9')
    a('v_xor_b32 v7, 2, v7')
    a('v_lshl_add_u32 v9, v7, 4, v9')
    a('v_add_u32 v9, %d, v9' % (8 * WP))
    a('s_mul_i32 s48, s43, 6144')
    a('s_waitcnt lgkmcnt(0)')
    a('s_cmp_eq_u32 s38, 0')
    a('s_cselect_b32 s52, s4, s10')
    a('s_cselect_b32 s53, s5, s11')
    a('s_cselect_b32 s54, s6, s12')
    a('s_cselect_b32 s55, s7, s13')
    srd(a, 24, 's52', 's53', str(X_BYTES))
    srd(a, 28, 's54', 's55', str(D * WP))
    a('s_mul_i32 s56, s38, %d' % (H * 3 * HB))
    a('s_add_u32 s52, s20, s56')
    a('s_addc_u32 s53, s21, 0')
    srd(a, 32, 's52', 's53', str(H * 3 * HB))
    vm2 = Ctr(a, 'vmcnt', 63)
    seq = {}
    def dma(sg):
        sl = sg % NSLOT
        for e in range(2):
            for i in range(3):
                a('s_add_u32 s57, s48, %d' % (sl * WSLOT + e * 3072 + i * 1024))
                a('s_mov_b32 m0, s57')
                a('s_mov_b32 s59, %d' % (sg * 64 * WP + i * 128))
                a('buffer_load_dwordx4 %s, s[28:31], s59 offen lds' % ('v9' if e else 'v10')); vm2.issue()
        for i in range(4):
            a('s_add_u32 s57, s58, %d' % (sl * XSLOT + i * 1024))
            a('s_mov_b32 m0, s57')
            a('s_mov_b32 s59, %d' % (sg * 128 + (i >> 1) * 16 * D * 2))
            a('buffer_load_dwordx4 %s, s[24:27], s59 offen lds' % ('v6' if i & 1 else 'v11')); seq[sg] = vm2.issue()
    for sg in range(2): dma(sg)
    a('v_and_b32 v5, 31, v2')
    a('v_lshrrev_b32 v7, 5, v2')
    a('s_mul_i32 s46, s41, 7')
    a('s_lshl_b32 s45, s42, 2')
    a('s_add_u32 s45, s45, s43')
    a('s_lshl_b32 s45, s45, 11')
    pads = []
    for q in range(4):
        a('v_add_u32 v12, %d, v7' % (2 * q))
        a('v_add_u32 v8, s46, v12')
        a('v_mul_u32_u24 v13, 0x5556, v8')
        a('v_lshrrev_b32 v13, 16, v13')
        a('v_mul_u32_u24 v13, 3, v13')
        a('v_sub_u32 v13, v8, v13')
        a('v_cmp_eq_u32 vcc, 2, v13')
        d0 = 16 + 4 * q
        a('v_mov_b32 v%d, 0x3f80' % d0)
        a('v_cndmask_b32 v%d, 0, v%d, vcc' % (d0, d0))
        a('v_mov_b32 v%d, 0' % (d0 + 1))
        a('v_cndmask_b32 v13, 0, 28, vcc')
        a('v_xor_b32 v13, v13, v5')
        a('v_lshlrev_b32 v13, 3, v13')
        a('v_lshl_add_u32 v13, v8, 17, v13')
        a('v_add_u32 v13, %d, v13' % (7 * 256))
        a('v_cmp_gt_u32 vcc, 7, v12')
        a('v_mov_b32 v14, 0x7f000000')
        a('v_cndmask_b32 v%d, v14, v13, vcc' % (d0 + 2))
        pads.append(d0)
    if OTOUCH1:
        for d0 in pads:
            a('buffer_load_dword v%d, v%d, s[32:35], s45 offen' % (d0 + 3, d0 + 2)); vm2.issue()
    for sg in range(NST):
        vm2.wait(seq[sg])
        a('s_barrier')
        if sg + 2 < NST: dma(sg + 2)
    for d0 in pads:
        a('buffer_store_dwordx2 v[%d:%d], v%d, s[32:35], s45 offen' % (d0, d0 + 1, d0 + 2))
    a.label('L_end_%s' % kname)
    a('s_endpgm')
    return dict(name=kname, grid=NWG, block=512, lds=LDS)


def attn4(a, kname):
    NWG = 256
    KB, VB = 0, 32768
    LDS = 65536
    header(a, kname, NWG)
    vm = Ctr(a, 'vmcnt', 63)
    lg = Ctr(a, 'lgkmcnt', 15)
    st = Stamps(a, lg)
    st()
    prologue_ptrs(a)
    a('v_lshrrev_b32 v1, 6, v0')
    a('v_and_b32 v2, 63, v0')
    a('v_readfirstlane_b32 s40, v1')
    a('s_and_b32 s36, s2, 7')
    a('s_lshr_b32 s37, s2, 3')
    a('s_lshr_b32 s38, s36, 2')
    a('s_and_b32 s36, s36, 3')
    a('s_and_b32 s39, s37, 15')
    a('s_lshr_b32 s41, s37, 4')
    a('s_lshl_b32 s42, s36, 1')
    a('s_add_u32 s42, s42, s41')
    a('v_and_b32 v3, 31, v2')
    a('v_lshrrev_b32 v4, 5, v2')
    a('v_lshlrev_b32 v5, 4, v2')
    a('s_lshl_b32 s43, s42, 14')
    a('s_lshl_b32 s44, s40, 12')
    a('s_add_u32 s45, s43, s44')
    a('s_sub_u32 s45, s45, 16384')
    a('v_add_u32 v7, s45, v5')
    a('v_lshlrev_b32 v6, 3, v3')
    a('v_lshl_add_u32 v6, v4, 9, v6')
    a('s_lshl_b32 s46, s40, 11')
    a('s_add_u32 s47, s43, s46')
    a('v_add_u32 v10, s47, v6')
    a('v_add_u32 v12, s46, v6')
    a('v_bfe_u32 v6, v2, 4, 1')
    a('v_and_b32 v8, 3, v2')
    a('v_lshl_add_u32 v6, v6, 2, v8')
    a('v_bfe_u32 v8, v2, 2, 2')
    a('v_lshl_add_u32 v8, v4, 2, v8')
    a('v_lshlrev_b32 v9, 2, v6')
    a('v_xor_b32 v8, v8, v9')
    a('v_lshlrev_b32 v9, 8, v6')
    a('v_add_u32 v9, s46, v9')
    a('v_add_u32 v9, %d, v9' % VB)
    a('v_lshl_add_u32 v13, v8, 3, v9')
    a('v_xor_b32 v14, 64, v13')
    a('v_xor_b32 v15, 128, v13')
    a('v_xor_b32 v1, 192, v13')
    a('s_mul_i32 s48, s39, 7')
    a('v_add_u32 v8, s48, v4')
    a('v_lshrrev_b32 v9, 1, v8')
    a('v_lshlrev_b32 v9, 8, v9')
    a('v_and_b32 v8, 1, v8')
    a('v_lshl_add_u32 v9, v8, 3, v9')
    a('v_and_b32 v8, 15, v3')
    a('v_lshl_add_u32 v9, v8, 4, v9')
    a('s_lshl_b32 s49, s42, 4')
    a('s_lshl_b32 s50, s40, 1')
    a('s_add_u32 s49, s49, s50')
    a('v_lshrrev_b32 v8, 4, v3')
    a('v_add_u32 v8, s49, v8')
    a('v_mul_u32_u24 v8, %d, v8' % (56 * 256))
    a('v_add_u32 v11, v8, v9')
    a('s_waitcnt lgkmcnt(0)')
    a('s_lshl_b32 s56, s38, 4')
    a('s_add_u32 s56, s56, s39')
    a('s_mul_i32 s56, s56, %d' % (3 * HB))
    a('s_add_u32 s52, s20, s56')
    a('s_addc_u32 s53, s21, 0')
    srd(a, 24, 's52', 's53', str(HB))
    a('s_add_u32 s52, s52, %d' % HB)
    a('s_addc_u32 s53, s53, 0')
    srd(a, 28, 's52', 's53', str(HB))
    a('s_add_u32 s52, s52, %d' % HB)
    a('s_addc_u32 s53, s53, 0')
    srd(a, 32, 's52', 's53', str(HB))
    a('s_mul_i32 s56, s38, %d' % O_BR)
    a('s_add_u32 s56, s56, %d' % O_OFF)
    a('s_add_u32 s52, s20, s56')
    a('s_addc_u32 s53, s21, 0')
    srd(a, 60, 's52', 's53', str(O_BR))
    if TOUCH:
        a('s_cmp_eq_u32 s38, 0')
        a('s_cselect_b32 s54, s8, s14')
        a('s_cselect_b32 s55, s9, s15')
        srd(a, 64, 's54', 's55', str(D * D * 2))
        a('s_mul_i32 s54, s37, 98')
        a('v_add_u32 v8, s54, v0')
        a('v_lshlrev_b32 v8, 7, v8')
        a('v_cmp_gt_u32 vcc, 98, v0')
        a('v_mov_b32 v9, 0x7f000000')
        a('v_cndmask_b32 v9, v9, v8, vcc')
    SB = 16
    FR = 160
    QR = 232
    OA = 240
    def sr(t): return SB + 16 * t
    st()
    for i in range(4):
        a('s_add_u32 s54, s44, %d' % (KB + i * 1024))
        a('s_mov_b32 m0, s54')
        a('v_add_u32 v8, %d, v7' % (i * 1024))
        a('buffer_load_dwordx4 v8, s[28:31], 0 offen lds'); vm.issue()
    for j in range(2):
        for e in range(2):
            a('buffer_load_dwordx2 v[%d:%d], v10, s[24:27], 0 offen offset:%d' % (QR + 4 * j + 2 * e, QR + 4 * j + 2 * e + 1, j * 1024 + e * 256)); kqseq = vm.issue()
    for i in range(4):
        a('s_add_u32 s54, s44, %d' % (VB + i * 1024))
        a('s_mov_b32 m0, s54')
        a('v_add_u32 v8, %d, v7' % (i * 1024))
        a('buffer_load_dwordx4 v8, s[32:35], 0 offen lds'); vm.issue()
    a('v_lshlrev_b32 v5, 2, v4')
    a('v_sub_u32 v5, v3, v5')
    a('v_mov_b32 v6, 0xff800000')
    a('s_cmp_eq_u32 s42, 0')
    a('s_cselect_b32 s57, s40, 100')
    a('s_cmp_lt_u32 s57, 8')
    a('s_cselect_b32 s58, 0xff800000, 0')
    a('v_mov_b32 v8, s58')
    for r in range(16):
        bb = 8 * (r >> 2) + (r & 3)
        a('v_cmp_le_i32 vcc, %d, v5' % bb)
        a('v_cndmask_b32 v%d, v8, v6, vcc' % (sr(0) + r))
        a('v_cndmask_b32 v%d, v6, 0, vcc' % (sr(8) + r))
    for t in range(1, 8):
        a('s_cmp_lt_u32 s57, %d' % (8 - t))
        a('s_cselect_b32 s58, 0xff800000, 0')
        a('v_mov_b32 v%d, s58' % sr(t))
        for r in range(1, 16):
            a('v_mov_b32 v%d, v%d' % (sr(t) + r, sr(t)))
    st()
    vm.wait(kqseq)
    a('s_barrier')
    st()
    ntouch = 0
    if TOUCH:
        a('buffer_load_dword v9, v9, s[64:67], 0 offen'); vm.issue(); ntouch += 1
    if OTOUCH:
        for i in range(4):
            a('buffer_load_dword v8, v11, s[60:63], 0 offen offset:%d' % (i * 256)); vm.issue(); ntouch += 1
    kseq = {}
    def kread(t, j):
        b = FR + (2 * t + j) * 4
        off = KB + t * 2048 + j * 1024
        a('ds_read_b64 v[%d:%d], v12 offset:%d' % (b, b + 1, off)); lg.issue()
        a('ds_read_b64 v[%d:%d], v12 offset:%d' % (b + 2, b + 3, off + 256)); kseq[(t, j)] = lg.issue()
    order = [(t, j) for t in range(9) for j in range(2)]
    M0_, M1_, T_ = 5, 6, 7
    def tmax(t, part):
        s_ = sr(t) + 8 * part
        m = M0_ if part == 0 else M1_
        if t == 0:
            a('v_max3_f32 v%d, v%d, v%d, v%d' % (m, s_, s_ + 1, s_ + 2))
            a('v_max3_f32 v%d, v%d, v%d, v%d' % (m, m, s_ + 3, s_ + 4))
            a('v_max3_f32 v%d, v%d, v%d, v%d' % (m, m, s_ + 5, s_ + 6))
            a('v_max_f32 v%d, v%d, v%d' % (m, m, s_ + 7))
        else:
            for k in range(4):
                a('v_max3_f32 v%d, v%d, v%d, v%d' % (m, m, s_ + 2 * k, s_ + 2 * k + 1))
    for (t, j) in order[:7]: kread(t, j)
    for idx, (t, j) in enumerate(order):
        lg.wait(kseq[(t, j)])
        b = FR + (2 * t + j) * 4
        s = sr(t)
        a('v_mfma_f32_32x32x16_bf16 v[%d:%d], v[%d:%d], v[%d:%d], v[%d:%d]' % (s, s + 15, b, b + 3, QR + 4 * j, QR + 4 * j + 3, s, s + 15))
        if idx + 7 < 18: kread(*order[idx + 7])
        if t >= 2: tmax(t - 2, j)
    vm.wait(vm.issued - ntouch)
    a('s_barrier')
    vseq = {}
    def vread(t, j):
        b = FR + (2 * t + j) * 4
        off = t * 2048
        a('ds_read_b64_tr_b16 v[%d:%d], %s offset:%d' % (b, b + 1, 'v15' if j else 'v13', off)); lg.issue()
        a('ds_read_b64_tr_b16 v[%d:%d], %s offset:%d' % (b + 2, b + 3, 'v1' if j else 'v14', off)); vseq[(t, j)] = lg.issue()
    for (t, j) in order[:6]: vread(t, j)
    st()
    for t in (7, 8):
        tmax(t, 0); tmax(t, 1)
    a('v_max_f32 v%d, v%d, v%d' % (M0_, M0_, M1_))
    a('v_mov_b32 v%d, v%d' % (T_, M0_))
    a('v_permlane32_swap_b32 v%d, v%d' % (T_, M0_))
    a('v_max_f32 v%d, v%d, v%d' % (M0_, M0_, T_))
    st()
    for idx, (t, j) in enumerate(order):
        r0 = sr(t) + 8 * j
        for k in range(8):
            a('v_sub_f32 v%d, v%d, v%d' % (r0 + k, r0 + k, M0_))
        for k in range(8):
            a('v_exp_f32 v%d, v%d' % (r0 + k, r0 + k))
        for k in range(4):
            a('v_cvt_pk_bf16_f32 v%d, v%d, v%d' % (r0 + k, r0 + 2 * k, r0 + 2 * k + 1))
        lg.wait(vseq[(t, j)])
        b = FR + (2 * t + j) * 4
        c = '0' if idx == 0 else 'v[%d:%d]' % (OA, OA + 15)
        a('v_mfma_f32_32x32x16_bf16 v[%d:%d], v[%d:%d], v[%d:%d], %s' % (OA, OA + 15, b, b + 3, r0, r0 + 3, c))
        if idx + 6 < 18: vread(*order[idx + 6])
    st()
    a('v_cmp_eq_u32 vcc, 0, v4')
    a('v_mov_b32 v5, 0x7f000000')
    a('v_cndmask_b32 v15, v5, v11, vcc')
    a('v_mov_b32 v5, v%d' % (OA + 12))
    a('v_mov_b32 v6, v%d' % (OA + 12))
    a('v_permlane32_swap_b32 v5, v6')
    a('v_rcp_f32 v6, v6')
    for i in range(4):
        o = OA + 4 * i
        for k in range(4):
            a('v_mul_f32 v%d, v%d, v6' % (o + k, o + k))
        a('v_cvt_pk_bf16_f32 v%d, v%d, v%d' % (o, o, o + 1))
        a('v_cvt_pk_bf16_f32 v%d, v%d, v%d' % (o + 1, o + 2, o + 3))
        a('buffer_store_dwordx2 v[%d:%d], %s, s[60:63], 0 offen offset:%d' % (o, o + 1, 'v15' if i == 3 else 'v11', i * 256))
    st.flush(1)
    a.label('L_end_%s' % kname)
    a('s_endpgm')
    return dict(name=kname, grid=NWG, block=512, lds=LDS)


def proj4(a, kname):
    NB, MBX = 7, 4
    WP, OP = D * 2, 2 * D * 2
    NWG = 8 * NB * MBX
    NKS, NST, NSLOT = 14, 7, 6
    NF = 4
    EOFF = NKS * 2048 + 8
    XOFF = 2 * NKS * 2048 + 128
    XSLOT = 16384
    LDS = XOFF + NSLOT * XSLOT
    header(a, kname, NWG)
    lg = Ctr(a, 'lgkmcnt', 15)
    st = Stamps(a, lg)
    st()
    prologue_ptrs(a)
    a('v_lshrrev_b32 v1, 6, v0')
    a('v_and_b32 v2, 63, v0')
    a('v_readfirstlane_b32 s40, v1')
    a('s_and_b32 s36, s2, 7')
    a('s_lshr_b32 s37, s2, 3')
    a('s_lshr_b32 s38, s36, 2')
    a('s_and_b32 s36, s36, 3')
    a('s_mul_i32 s39, s37, 37')
    a('s_lshr_b32 s39, s39, 8')
    a('s_mul_i32 s41, s39, %d' % NB)
    a('s_sub_u32 s41, s37, s41')
    a('s_mul_i32 s42, s36, %d' % MBX)
    a('s_add_u32 s42, s42, s39')
    a('s_and_b32 s46, s40, 3')
    a('s_lshl_b32 s43, s42, 3')
    a('s_lshl_b32 s44, s46, 1')
    a('s_add_u32 s43, s43, s44')
    a('s_lshl_b32 s47, s41, 7')
    a('v_and_b32 v3, 15, v2')
    a('v_lshrrev_b32 v4, 4, v2')
    a('v_lshlrev_b32 v6, 4, v2')
    a('s_cmp_ge_u32 s40, 4')
    a('s_cbranch_scc1 L_load_%s' % kname)
    a('s_lshl_b32 s44, s43, 4')
    a('v_add_u32 v5, s44, v3')
    a('v_mul_u32_u24 v7, %d, v5' % OP)
    a('v_lshl_add_u32 v7, v4, 4, v7')
    a('v_add_u32 v7, s47, v7')
    a('s_mov_b32 s48, %d' % (16 * OP))
    a('s_lshl_b32 s44, s46, 12')
    a('s_add_u32 s44, s44, %d' % XOFF)
    a('v_add_u32 v6, s44, v6')
    a('v_and_b32 v10, 1, v4')
    a('v_mul_u32_u24 v10, %d, v10' % EOFF)
    a('v_lshrrev_b32 v8, 1, v4')
    a('v_lshl_add_u32 v10, v8, 10, v10')
    a('v_lshrrev_b32 v8, 2, v3')
    a('v_lshl_add_u32 v10, v8, 7, v10')
    a('v_and_b32 v12, 3, v2')
    a('v_lshl_add_u32 v10, v12, 4, v10')
    a('v_lshrrev_b32 v8, 1, v8')
    a('v_lshl_add_u32 v10, v8, 6, v10')
    a('v_xor_b32 v12, 64, v10')
    a('s_waitcnt lgkmcnt(0)')
    a('s_mul_i32 s56, s38, %d' % (D * 2))
    a('s_add_u32 s52, s16, s56')
    a('s_addc_u32 s53, s17, 0')
    a('s_sub_u32 s57, %d, s56' % OUT_BYTES)
    srd(a, 32, 's52', 's53', 's57')
    XB = 16
    WB = XB + 16
    AC = WB + 2 * NF * 4
    def xr(ks, rt): return XB + ((ks & 1) * 2 + rt) * 4
    def wr(ks, f): return WB + ((ks & 1) * NF + f) * 4
    def ac(f, rt): return AC + (f * 2 + rt) * 4
    rseq, xseq = {}, {}
    def wreads(ks, f):
        tp, t = f >> 1, f & 1
        b = wr(ks, f)
        off = ks * 2048 + 8 * t
        ad = 'v12' if tp else 'v10'
        a('ds_read_b64_tr_b16 v[%d:%d], %s offset:%d' % (b, b + 1, ad, off)); lg.issue()
        a('ds_read_b64_tr_b16 v[%d:%d], %s offset:%d' % (b + 2, b + 3, ad, off + 512)); rseq[(ks, f)] = lg.issue()
    def xread(ks, rt):
        b = xr(ks, rt)
        off = ((ks >> 1) % NSLOT) * XSLOT + rt * 2048 + (ks & 1) * 1024
        if off < 65536:
            a('ds_read_b128 v[%d:%d], v6 offset:%d' % (b, b + 3, off))
        else:
            a('ds_read_b128 v[%d:%d], v11 offset:%d' % (b, b + 3, off - 65536))
        xseq[(ks, rt)] = lg.issue()
    a('v_add_u32 v11, 0x10000, v6')
    st()
    st()
    a('s_barrier')
    st()
    for rt in range(2): xread(0, rt)
    for f in range(NF): wreads(0, f)
    for ks in range(NKS):
        nxt = ks + 1 < NKS
        if nxt and (ks + 1) % 2 == 0:
            lg.wait(lg.issued)
            a('s_barrier')
            if (ks + 1) // 2 in (2, 4, 6): st()
        if nxt:
            for rt in range(2): xread(ks + 1, rt)
        for f in range(NF):
            lg.wait(rseq[(ks, f)])
            if f == 0: lg.wait(xseq[(ks, 1)])
            b = wr(ks, f)
            for rt in range(2):
                c = ac(f, rt); xb = xr(ks, rt)
                cs = '0' if ks == 0 else 'v[%d:%d]' % (c, c + 3)
                a('v_mfma_f32_16x16x32_bf16 v[%d:%d], v[%d:%d], v[%d:%d], %s' % (c, c + 3, b, b + 3, xb, xb + 3, cs))
            if nxt:
                wreads(ks + 1, f)
    st()
    for tp in range(2):
        for rt in range(2):
            c0, c1 = ac(2 * tp, rt), ac(2 * tp + 1, rt)
            o = XB + (tp * 2 + rt) * 4
            a('v_cvt_pk_bf16_f32 v%d, v%d, v%d' % (o, c0, c0 + 1))
            a('v_cvt_pk_bf16_f32 v%d, v%d, v%d' % (o + 1, c0 + 2, c0 + 3))
            a('v_cvt_pk_bf16_f32 v%d, v%d, v%d' % (o + 2, c1, c1 + 1))
            a('v_cvt_pk_bf16_f32 v%d, v%d, v%d' % (o + 3, c1 + 2, c1 + 3))
            a('buffer_store_dwordx4 v[%d:%d], v7, s[32:35], %s offen offset:%d' % (o, o + 3, 's48' if rt else '0', tp * 64))
    st.flush(2)
    a('s_endpgm')
    a.label('L_load_%s' % kname)
    a.reset_hazards()
    a('s_mul_i32 s44, s43, %d' % (56 * 256))
    a('v_add_u32 v6, s44, v6')
    a('s_lshl_b32 s58, s46, 12')
    a('s_add_u32 s58, s58, %d' % XOFF)
    a('v_lshrrev_b32 v5, 3, v2')
    a('s_lshl_b32 s49, s46, 4')
    a('v_add_u32 v9, s49, v5')
    a('v_mul_u32_u24 v9, %d, v9' % WP)
    a('v_bfe_u32 v8, v5, 1, 1')
    a('v_lshlrev_b32 v8, 2, v8')
    a('v_and_b32 v12, 7, v2')
    a('v_xor_b32 v8, v8, v12')
    a('v_lshl_add_u32 v9, v8, 4, v9')
    a('v_add_u32 v9, s47, v9')
    a('s_lshr_b32 s45, s46, 1')
    a('s_lshl_b32 s45, s45, 11')
    a('s_and_b32 s49, s46, 1')
    a('s_lshl_b32 s49, s49, 10')
    a('s_add_u32 s45, s45, s49')
    a('s_waitcnt lgkmcnt(0)')
    a('s_cmp_eq_u32 s38, 0')
    a('s_cselect_b32 s54, s8, s14')
    a('s_cselect_b32 s55, s9, s15')
    srd(a, 28, 's54', 's55', str(D * D * 2))
    a('s_mul_i32 s56, s38, %d' % O_BR)
    a('s_add_u32 s56, s56, %d' % O_OFF)
    a('s_add_u32 s52, s20, s56')
    a('s_addc_u32 s53, s21, 0')
    srd(a, 24, 's52', 's53', str(O_BR))
    vm2 = Ctr(a, 'vmcnt', 63)
    seq = {}
    def dma(sg):
        sl = sg % NSLOT
        for e in range(2):
            a('s_add_u32 s57, s45, %d' % (e * EOFF + sg * 4096))
            a('s_mov_b32 m0, s57')
            a('s_mov_b32 s59, %d' % ((sg * 64 + e * 8) * WP))
            a('buffer_load_dwordx4 v9, s[28:31], s59 offen lds'); vm2.issue()
        for i in range(4):
            rt, p = i >> 1, i & 1
            a('s_add_u32 s57, s58, %d' % (sl * XSLOT + rt * 2048 + p * 1024))
            a('s_mov_b32 m0, s57')
            a('s_mov_b32 s59, %d' % (rt * 56 * 256 + (2 * sg + p) * 1024))
            a('buffer_load_dwordx4 v6, s[24:27], s59 offen lds'); seq[sg] = vm2.issue()
    for sg in range(3): dma(sg)
    for sg in range(NST):
        vm2.wait(seq[sg])
        a('s_barrier')
        if sg + 3 < NST: dma(sg + 3)
    a.label('L_end_%s' % kname)
    a('s_endpgm')
    return dict(name=kname, grid=NWG, block=512, lds=LDS)


if __name__ == '__main__':
    if 'stamp' in sys.argv:
        gen.STAMP = True
    if 'notouch' in sys.argv:
        TOUCH = False
    if 'nootouch' in sys.argv:
        OTOUCH = False
    if 'nootouch1' in sys.argv:
        OTOUCH1 = False
    dst = sys.argv[1] if len(sys.argv) > 1 else 'cdna_kernels/%s.s' % NAME
    open(dst, 'w').write(build([lambda a: qkv4(a, 'qkv_kernel'), lambda a: attn4(a, 'attn_kernel'), lambda a: proj4(a, 'proj_kernel')]))
```
